```python
import torch

def _softmax(x, axis=-1):
    return torch.softmax(x, dim=axis)

def _gelu(x):
    return torch.nn.functional.gelu(x, approximate='tanh')

def _silu(x):
    return torch.nn.functional.silu(x)

def _sigmoid(x):
    return torch.sigmoid(x)

def _layernorm(x, axis=-1, eps=1e-05):
    m = x.mean(dim=axis, keepdim=True)
    v = x.var(dim=axis, keepdim=True, unbiased=False)
    return (x - m) / torch.sqrt(v + eps)

def _scatter_add(tgt, idx, src, axis=0):
    return tgt.clone().index_add_(axis, idx, src)

def _segment_sum(src, seg, n):
    out = torch.zeros((n,) + src.shape[1:], dtype=src.dtype)
    return out.index_add_(0, seg, src)

def _pad(x, pw):
    flat = tuple((v for pair in reversed(pw) for v in pair))
    return torch.nn.functional.pad(x, flat)
kernel_name = 'gated_mix__memory_aug_recurrent_mem_tr__glu_gated_bilinear__prompt'

def setup_inputs():

    _w = lambda a: (lambda t: t.to(torch.bfloat16) if t.is_floating_point() else t)(torch.as_tensor(a))

    def _A_setup():
        B, S, Dm = (1, 2048, 512)
        H, Dh = (32, 128)
        M, seg = (8, 32)
        seg = min(seg, S)
        S = S // seg * seg
        return {'x': _w((lambda *s: torch.randn(*s, dtype=torch.bfloat16) * 0.05)(B, S, Dm)), 'mem0': _w((lambda *s: torch.randn(*s, dtype=torch.bfloat16) * 0.4)(B, M, Dm)), 'Wq': _w((lambda *s: torch.randn(*s, dtype=torch.bfloat16) * 6.4)(Dm, H, Dh) * Dm ** (-0.5)), 'Wk': _w((lambda *s: torch.randn(*s, dtype=torch.bfloat16) * 6.4)(Dm, H, Dh) * Dm ** (-0.5)), 'Wv': _w((lambda *s: torch.randn(*s, dtype=torch.bfloat16) * 0.4)(Dm, H, Dh) * Dm ** (-0.5)), 'Wo': _w((lambda *s: torch.randn(*s, dtype=torch.bfloat16) * 0.4)(H, Dh, Dm) * (H * Dh) ** (-0.5)), 'seg_len': seg}
    _A_in = _A_setup()

    def _B_setup():
        B, S, D, F = (1, 2048, 512, 1376)
        return {'x': _w((lambda *s: torch.randn(*s, dtype=torch.bfloat16) * 0.05)(B, S, D)), 'w_gate': _w((lambda *s: torch.randn(*s, dtype=torch.bfloat16) * 1.6)(D, F) * D ** (-0.5)), 'w_up': _w((lambda *s: torch.randn(*s, dtype=torch.bfloat16) * 1.6)(D, F) * D ** (-0.5)), 'w_down': _w((lambda *s: torch.randn(*s, dtype=torch.bfloat16) * 1.6)(F, D) * F ** (-0.5))}
    _B_in = _B_setup()
    return {'A_x': _A_in['x'], 'A_mem0': _A_in['mem0'], 'A_Wq': _A_in['Wq'], 'A_Wk': _A_in['Wk'], 'A_Wv': _A_in['Wv'], 'A_Wo': _A_in['Wo'], 'A_seg_len': _A_in['seg_len'], 'B_x': _B_in['x'], 'B_w_gate': _B_in['w_gate'], 'B_w_up': _B_in['w_up'], 'B_w_down': _B_in['w_down'], 'gate_w': _w((lambda *s: torch.randn(*s, dtype=torch.bfloat16) * 0.05)(512) * 16.0)}

def reference(A_x, A_mem0, A_Wq, A_Wk, A_Wv, A_Wo, A_seg_len, B_x, B_w_gate, B_w_up, B_w_down, gate_w):

    def _A_ref(x, mem0, Wq, Wk, Wv, Wo, seg_len):
        B, S, Dm = x.shape
        H, Dh = (Wq.shape[1], Wq.shape[2])
        M = mem0.shape[1]
        scale = Dh ** (-0.5)
        n_seg = S // seg_len
        L = M + seg_len
        idx = torch.arange(L)
        mask = (idx[:, None] < M) | (idx[:, None] >= idx[None, :])
        mem = mem0
        outs = []
        for s in range(n_seg):
            xs = x[:, s * seg_len:(s + 1) * seg_len, :].clone()
            h = torch.concatenate([mem, xs], axis=1)
            q = torch.einsum('btd,dhe->bhte', h, Wq)
            k = torch.einsum('btd,dhe->bhte', h, Wk)
            v = torch.einsum('btd,dhe->bhte', h, Wv)
            scores = torch.einsum('bhqe,bhke->bhqk', q, k) * scale
            scores = torch.where(mask[None, None], scores, -1000000000.0)
            p = _softmax(scores, axis=-1)
            o = torch.einsum('bhqk,bhke->bhqe', p, v)
            o = torch.einsum('bhte,hed->btd', o, Wo)
            mem = o[:, :M, :].clone()
            outs.append(o[:, M:, :])
        return torch.concatenate(outs, axis=1)

    def _B_ref(x, w_gate, w_up, w_down):
        g = torch.einsum('bsd,df->bsf', x, w_gate)
        u = torch.einsum('bsd,df->bsf', x, w_up)
        h = g * u
        return torch.einsum('bsf,fd->bsd', h, w_down)
    x = A_x
    g = _sigmoid((x * gate_w).sum(-1, keepdims=True))
    a = _A_ref(x, A_mem0, A_Wq, A_Wk, A_Wv, A_Wo, A_seg_len)
    b = _B_ref(x, B_w_gate, B_w_up, B_w_down)
    return g * a + (1 - g) * b
```

```python
import re
REG = re.compile(r'\b([vas])(\d+)\b|\b([vas])\[(\d+):(\d+)\]|\b(vcc|exec|m0|scc)\b')
def regs(s):
    out = []
    for m in REG.finditer(s):
        if m.group(1): out.append((m.group(1), int(m.group(2))))
        elif m.group(3): out += [(m.group(3), i) for i in range(int(m.group(4)), int(m.group(5))+1)]
        else: out.append((m.group(6), 0))
    return out
TRANS = ("v_exp_", "v_log_", "v_rcp_", "v_rsq_", "v_sqrt_", "v_sin_", "v_cos_")
class I:
    __slots__ = ("t","op","cls","w","r","c","passes","dpp","perm","trans","wide","data","states","rl","label","target","ab")
    def __init__(s, t):
        s.t = t; s.label = None; s.target = None
        t0 = t.split(";")[0].strip()
        s.w = set(); s.r = set(); s.c = set(); s.ab = set(); s.data = set(); s.passes = 0
        s.dpp = s.perm = s.trans = s.wide = s.rl = False; s.states = 1
        if t0.endswith(":"): s.cls = "label"; s.label = t0[:-1]; s.op = ""; s.states = 0; return
        if t0.startswith(".") or not t0: s.cls = "dir"; s.op = ""; s.states = 0; return
        p = t0.split(None, 1); op = s.op = p[0]; rest = p[1] if len(p) > 1 else ""
        ops = [x.strip() for x in re.split(r',(?![^\[]*\])', rest)]
        R = lambda i: set(regs(ops[i])) if i < len(ops) else set()
        allr = lambda k: set().union(*[R(i) for i in range(k, len(ops))]) if len(ops) > k else set()
        if op.startswith("v_mfma") or op.startswith("v_smfmac"):
            s.cls = "mfma"; s.passes = 8 if "32x32" in op else 4
            s.w = R(0)
            if op.startswith("v_smfmac"): s.c = R(0); s.ab = R(1) | R(2) | R(3)
            else: s.c = R(3); s.ab = R(1) | R(2)
            s.r = s.c | s.ab
        elif op.startswith("v_"):
            s.cls = "valu"
            s.dpp = "_dpp" in op or "row_" in rest or "quad_perm" in rest
            s.trans = op.startswith(TRANS)
            if op.startswith("v_permlane") or op.startswith("v_swap"):
                s.perm = op.startswith("v_permlane"); s.w = R(0) | R(1); s.r = R(0) | R(1)
            elif op.startswith("v_cmp"):
                s.w = R(0); s.r = allr(1)
            elif op.startswith(("v_readfirstlane", "v_readlane")):
                s.rl = True; s.w = R(0); s.r = allr(1)
            elif "_co_" in op:
                s.w = R(0) | R(1); s.r = allr(2)
            else:
                s.w = R(0); s.r = allr(1)
                if op.startswith(("v_fmac", "v_mac", "v_pk_fmac", "v_writelane")) or s.dpp: s.r |= R(0)
                if op.startswith("v_cndmask") and len(ops) == 3: s.r.add(("vcc", 0))
        elif op.startswith("ds_"):
            s.cls = "ds"
            if "read" in op or "permute" in op or "swizzle" in op or "_rtn" in op: s.w = R(0); s.r = allr(1)
            else: s.r = allr(0)
        elif op.startswith(("global_", "buffer_", "flat_")):
            s.cls = "vmem"
            islds = "_lds_" in op or re.search(r'\blds\b', rest)
            if islds: s.r = allr(0) | {("m0", 0)}; s.cls = "vmem"; s.data = {("ldsdma",0)}
            elif "load" in op: s.w = R(0); s.r = allr(1)
            elif "atomic" in op and " sc0" in rest and op.startswith("global_"): s.w = R(0); s.r = allr(1)
            else:
                s.r = allr(0)
                if "x3" in op or "x4" in op: s.wide = True; s.data = R(1) if op.startswith("global_") else R(0)
        elif op.startswith("s_"):
            s.cls = "salu"
            if op == "s_nop": s.states = int(rest, 0) + 1
            elif op.startswith(("s_branch", "s_cbranch")): s.target = rest.strip()
            elif op.startswith(("s_cmp", "s_waitcnt", "s_barrier", "s_endpgm", "s_sleep", "s_setprio", "s_bitcmp")): s.r = allr(0)
            else: s.w = R(0); s.r = allr(1)
        else: raise ValueError("unknown instr " + t)
def need(p, c):
    n = 0
    vg = lambda S: {x for x in S if x[0] in "va"}
    sg = lambda S: {x for x in S if x[0] in ("s", "vcc")}
    if p.cls == "valu":
        wv = vg(p.w); ws = sg(p.w)
        if c.cls == "mfma" and wv & c.r: n = max(n, 2)
        if c.cls == "valu":
            if (c.dpp or c.perm) and wv & c.r: n = max(n, 2)
            if c.rl and wv & c.r: n = max(n, 1)
            if ws & c.r: n = max(n, 4 if (c.rl or c.op.startswith("v_writelane")) else 2)
            if p.trans and wv & c.r: n = max(n, 1)
            if ("op_sel" in p.t or "_sdwa" in p.op) and wv & (c.r | c.w): n = max(n, 1)
        if p.trans and c.cls in ("vmem","ds") and wv & c.r: n = max(n, 1)
        if c.cls == "vmem" and ws & c.r: n = max(n, 5)
    if p.cls in ("ds", "vmem") and c.cls == "valu" and c.dpp and False: pass
    if p.cls == "mfma":
        big = {4: 8, 8: 12}[p.passes]
        if c.cls == "mfma":
            if p.w & c.ab: n = max(n, big)
            if p.w & c.c and not (p.w == c.c and p.op == c.op): n = max(n, big - 2)
            if p.w & c.w and not (p.w == c.c): n = max(n, big)
        elif c.cls in ("valu", "ds", "vmem"):
            if p.w & (c.r | c.w): n = max(n, big)
            if c.cls == "valu" and p.c & c.w: n = max(n, {4: 3, 8: 7}[p.passes])
    if p.cls == "vmem" and p.wide and p.data & c.w: n = max(n, 2)
    if p.cls == "salu" and ("m0", 0) in p.w and ("ldsdma", 0) in c.data: n = max(n, 1)
    return n
TIMED = True
class Asm:
    def __init__(s): s.L = []
    def __call__(s, *ts):
        for t in ts:
            for x in t.split("\n"):
                if x.strip(): s.L.append(I(x.strip()))
    def ext(s, lst):
        for t in lst: s(t)
    @staticmethod
    def deficit(hist, c):
        h = [p for p in hist if p.states][-14:]
        d = 0
        for k, p in enumerate(h):
            n = need(p, c)
            if n <= 0: continue
            t = 0; lastm = None
            sq = h[k:] + [c]
            for qi, q in enumerate(sq):
                if q.cls == "mfma" and p.cls == "mfma" and TIMED:
                    if lastm is not None: t = max(t, lastm)
                    lastm = t + q.passes
                if qi == len(sq) - 1: break
                t += q.states
            d = max(d, n + 1 - t)
        return d
    def finish(s):
        out = []; nn = 0
        for c in s.L:
            if c.states:
                h = out[-40:]
                for k in range(len(h)-1, -1, -1):
                    if h[k].op in ("s_branch", "s_endpgm"): h = h[k+1:]; break
                d = s.deficit(h, c)
                if d > 0: out.append(I(f"s_nop {d-1}")); nn += d
            out.append(c)
        lab = {c.label: i for i, c in enumerate(out) if c.label}
        fix = {}
        for i, b in enumerate(out):
            if b.target and b.target in lab:
                h = out[max(0, i-40):i+1]; j = lab[b.target]; dist = 0
                for c in out[j:j+30]:
                    if c.states:
                        d = s.deficit(h, c)
                        if d > 0: fix[i] = max(fix.get(i, 0), d)
                    h = h + [c]
                    if c.op in ("s_branch", "s_endpgm"): break
        for i in sorted(fix, reverse=True): out.insert(i, I(f"s_nop {fix[i]-1}"))
        s.nops = nn
        return "\n".join(("" if c.cls in ("label", "dir") else "  ") + c.t for c in out) + "\n"
def weave(main, fill, per=2, lead=0):
    out = []; f = list(fill)
    for k, m in enumerate(main):
        out.append(m)
        if k >= lead:
            for _ in range(per):
                if f: out.append(f.pop(0))
    return out + f
def khdr(name): return [f".globl {name}", ".p2align 8", f".type {name},@function", f"{name}:"]
def kdesc(name, nv, acc, nargs=15, ns=102):
    return "\n".join(['.section .rodata,"a"', ".p2align 6", f".amdhsa_kernel {name}", f"  .amdhsa_next_free_vgpr {nv}",
        f"  .amdhsa_next_free_sgpr {ns}", f"  .amdhsa_accum_offset {acc}", "  .amdhsa_group_segment_fixed_size 0",
        f"  .amdhsa_kernarg_size {8*nargs}", "  .amdhsa_user_sgpr_count 2", "  .amdhsa_user_sgpr_kernarg_segment_ptr 1",
        "  .amdhsa_system_sgpr_workgroup_id_x 1", ".end_amdhsa_kernel", ".text"]) + "\n"

def autowait(lines, state=None):
    lq, vq = ([], []) if state is None else (list(state[0]), list(state[1]))
    out = []
    def w(q, idx, name, mx):
        if any(e[0] == "SMEM" for e in q): idx = len(q) - 1
        n = len(q) - 1 - idx
        del q[:idx+1]
        return f"{name}({min(n, mx)})"
    for t in lines:
        t = t.strip()
        if t.startswith(("WAITL", "WAITV")):
            q, name, mx = (lq, "lgkmcnt", 15) if t[4] == "L" else (vq, "vmcnt", 63)
            tag = t.split()[1]
            idx = [i for i, e in enumerate(q) if e[0] == tag]
            if idx: out.append("s_waitcnt " + w(q, idx[-1], name, mx))
            continue
        c = I(t)
        if c.op == "s_waitcnt":
            m = re.search(r'lgkmcnt\((\d+)\)', t)
            if m: del lq[:max(0, len(lq) - int(m.group(1)))]
            m = re.search(r'vmcnt\((\d+)\)', t)
            if m: del vq[:max(0, len(vq) - int(m.group(1)))]
            out.append(t); continue
        use = c.r | c.w
        ws = []
        for q, name, mx in ((vq, "vmcnt", 63), (lq, "lgkmcnt", 15)):
            idx = [i for i, e in enumerate(q) if e[1] & use]
            if idx and not (c.cls == ("vmem" if name == "vmcnt" else "ds") and not any(q[i][1] & c.r for i in idx)):
                ws.append(w(q, idx[-1], name, mx))
        if ws: out.append("s_waitcnt " + " ".join(ws))
        out.append(t)
        tag = t.split(";#")[1].strip() if ";#" in t else None
        if c.op == "s_memtime": lq.append(("SMEM", set(c.w)))
        if c.cls == "ds": lq.append((tag, set(c.w)))
        elif c.cls == "vmem": vq.append((tag, set(c.w)))
    return out, (lq, vq)
```

```python
from asmlib import *
MB=1<<20
WS_KV=0; WS_KM=32*MB; WS_Q=64*MB; WS_O=80*MB; WS_H=96*MB
DB_KV=0
DB_H=40
DB_PROG=64
DB_O=128
def vr(b,n=1,k="v"): return f"{k}{b}" if n==1 else f"{k}[{b}:{b+n-1}]"
def m32(d,a,b,c=None): return f"v_mfma_f32_16x16x32_bf16 {vr(d,4)}, {a}, {b}, {'0' if c is None else vr(c,4)}"
def m16(d,a,b,c=None): return f"v_mfma_f32_16x16x16_bf16 {vr(d,4)}, {a}, {b}, {'0' if c is None else vr(c,4)}"
def pk(d,a,b): return f"v_cvt_pk_bf16_f32 v{d}, v{a}, v{b}"
WS="s[8:11]"; WT="s[32:35]"; XS="s[36:39]"; DBG="s[12:15]"; OUT="s[16:19]"
sW="s20"; sT="s21"; sSTG="s22"; sSEG="s23"; sA="s24"; sB="s25"; sC="s26"; sD="s27"; sXB="s28"; sE="s29"; sF="s30"; sG="s31"
vL=0; vL16=1; vTR0=2; vTR1=3; vWO=4; vXO=5; vXR=6; vZ=7; vONE=8; vt=9
def setup(A):
    A(f"""
    v_lshrrev_b32 v2, 6, v0
    v_and_b32 v0, 63, v0
    s_load_dwordx2 s[8:9], s[0:1], 112
    s_load_dwordx2 s[12:13], s[0:1], 104
    s_load_dwordx2 s[16:17], s[0:1], 96
    s_load_dwordx2 s[36:37], s[0:1], 0
    s_load_dwordx8 s[40:47], s[0:1], 16
    s_load_dwordx8 s[48:55], s[0:1], 64
    v_readfirstlane_b32 {sW}, v2
    s_mov_b32 s10, 0x10000000
    s_mov_b32 s11, 0x20000
    s_mov_b32 s14, 256
    s_mov_b32 s15, 0x20000
    s_mov_b32 s18, 0x200000
    s_mov_b32 s19, 0x20000
    s_mov_b32 s35, 0x20000
    s_mov_b32 s38, 0x200000
    s_mov_b32 s39, 0x20000
    s_and_b32 {sT}, s2, 7
    s_sub_u32 {sT}, {sT}, 1
    s_lshl_b32 {sT}, {sT}, 5
    s_lshr_b32 {sA}, s2, 3
    s_add_u32 {sT}, {sT}, {sA}
    s_lshl_b32 {sSTG}, {sW}, 15
    v_lshlrev_b32 v{vL16}, 4, v0
    v_mov_b32 v{vZ}, 0
    v_mov_b32 v{vONE}, 1
    """)
    A(f"""
    v_lshrrev_b32 v{vt}, 4, v0
    v_bfe_u32 v{vt+1}, v0, 2, 2
    v_lshl_add_u32 v{vt+1}, v{vt}, 3, v{vt+1}
    v_lshlrev_b32 v{vt+1}, 6, v{vt+1}
    v_and_b32 v{vt+2}, 3, v0
    v_lshl_add_u32 v{vt+1}, v{vt+2}, 3, v{vt+1}
    v_and_b32 v{vt+2}, 1, v{vt}
    v_lshl_add_u32 v{vt+1}, v{vt+2}, 5, v{vt+1}
    v_add_u32 v{vTR0}, {sSTG}, v{vt+1}
    v_xor_b32 v{vTR1}, 32, v{vTR0}
    v_and_b32 v{vt+1}, 15, v0
    v_lshlrev_b32 v{vt+1}, 10, v{vt+1}
    v_lshl_add_u32 v{vt+1}, v{vt}, 4, v{vt+1}
    s_lshl_b32 {sA}, {sW}, 8
    v_add_u32 v{vXO}, {sA}, v{vt+1}
    s_waitcnt lgkmcnt(0)
    """)
def wvoff(A, pitch, sigma, scol):
    A(f"v_lshrrev_b32 v{vt}, 2, v0")
    if sigma:
        A(f"""v_bfe_u32 v{vt+1}, v0, 4, 1
        v_lshlrev_b32 v{vt+1}, 4, v{vt+1}
        v_lshrrev_b32 v{vt+2}, 5, v0
        v_lshl_add_u32 v{vt+1}, v{vt+2}, 2, v{vt+1}
        v_and_b32 v{vt}, 3, v{vt}
        v_add_u32 v{vt}, v{vt}, v{vt+1}""")
    A(f"""v_mul_u32_u24 v{vt}, {pitch}, v{vt}
    v_lshrrev_b32 v{vt+1}, 5, v0
    v_lshlrev_b32 v{vt+1}, 1, v{vt+1}
    v_and_b32 v{vt+2}, 3, v0
    v_xor_b32 v{vt+1}, v{vt+1}, v{vt+2}
    v_lshl_add_u32 v{vt}, v{vt+1}, 4, v{vt}
    v_add_u32 v{vWO}, {scol}, v{vt}""")
def wload(items, depth=16):
    L=[]
    def issue(i):
        it=items[i]; o=list(it.get("pre",[])); sb,*im=it["so"]
        for hf in (0,1):
            o+=[f"s_add_u32 m0, {sSTG}, {(i%depth)*2048+hf*1024}",
                f"s_add_u32 {sG}, {sb}, {im[hf]}" if sb else f"s_mov_b32 {sG}, {im[hf]}",
                f"buffer_load_dwordx4 v{it.get('vo',vWO)}, {WT}, {sG} offen lds ;#w{i}"]
        return o
    n=len(items)
    for i in range(min(depth,n)): L+=issue(i)
    for i in range(n):
        k,r=items[i]["dst"]
        L+=[f"WAITV w{i}"]
        for s in (0,1):
            for hf in (0,1):
                L+=[f"ds_read_b64_tr_b16 {vr(r+4*s+2*hf,2,k)}, v{vTR0+s} offset:{(i%depth)*2048+256*hf} ;#r{i}"]
        if i>=1 and i-1+depth<n: L+=[f"WAITL r{i-1}"]+issue(i-1+depth)
    return L
def setw(lo, size): return [f"s_mov_b32 s32, s{lo}", f"s_mov_b32 s33, s{lo+1}", f"s_mov_b32 s34, {size}"]
def xdma(sseg):
    L=[f"s_lshl_b32 {sA}, {sseg}, 15", f"s_lshl_b32 {sB}, {sW}, 13", f"s_add_u32 {sB}, {sB}, {sXB}"]
    for kk in range(4):
        for t in (0,1):
            L+=[f"s_add_u32 m0, {sB}, {(kk*2+t)*1024}", f"s_add_u32 {sG}, {sA}, {t*16384+kk*64}", f"buffer_load_dwordx4 v{vXO}, {XS}, {sG} offen lds"]
    return L
XB0=0x20000
XR=16
def stream(A, tag, stride, mf, epi, nst, sig):
    A(f"""v_add_u32 v{vXR}, {XB0}, v{vL16}
    s_mov_b32 {sXB}, 0
    s_mov_b32 {sF}, 0
    s_waitcnt vmcnt(0) lgkmcnt(0)
    {tag}_top:
    s_waitcnt vmcnt({nst})
    s_barrier
    s_add_u32 {sE}, {sSEG}, {stride}
    s_min_u32 {sE}, {sE}, 63""")
    L=[]
    rd=lambda ks: [f"ds_read_b128 {vr(XR+8*(ks%4)+4*t,4)}, v{vXR} offset:{(2*ks+t)*1024}" for t in (0,1)]
    L+=rd(0)+rd(1)+rd(2)+xdma(sE)
    for ks in range(16):
        g=mf(ks,0,vr(XR+8*(ks%4),4))+mf(ks,1,vr(XR+8*(ks%4)+4,4))
        if ks+3<16: g=g[:1]+rd(ks+3)[:1]+g[1:2]+rd(ks+3)[1:]+g[2:]
        L+=g
        if ks==8 and sig:
            L+=["s_waitcnt vmcnt(8)", f"s_cmp_eq_u32 {sF}, 0", f"s_cbranch_scc1 {tag}_nosig"]+sig+[f"{tag}_nosig:"]
    L+=epi
    L,_=autowait(L); A.ext(L)
    A(f"""v_xor_b32 v{vXR}, {XB0}, v{vXR}
    s_xor_b32 {sXB}, {sXB}, {XB0}
    s_add_u32 {sF}, {sF}, 1
    s_add_u32 {sSEG}, {sSEG}, {stride}
    s_cmp_lt_u32 {sSEG}, 64
    s_cbranch_scc1 {tag}_top
    s_waitcnt vmcnt(0)""")
    if sig: A.ext(sig)
    A("s_barrier")
sH="s56"; sRG="s57"
def P1(A, flags):
    A(f"""s_mul_i32 {sH}, {sT}, 9363
    s_lshr_b32 {sH}, {sH}, 16
    s_mul_i32 {sA}, {sH}, 7
    s_sub_u32 {sRG}, {sT}, {sA}
    s_mov_b32 {sSEG}, {sRG}
    s_mov_b32 {sXB}, {XB0}""")
    A.ext(xdma(sSEG))
    A(f"s_lshl_b32 {sA}, {sH}, 8\n s_lshl_b32 {sB}, {sW}, 6\n s_add_u32 {sA}, {sA}, {sB}")
    wvoff(A, 8192, False, sA)
    W={"K":("a",0,42),"V":("a",128,44),"Q":("v",128,40)}
    items=[]
    for m in "KVQ":
        k,b,lo=W[m]
        for ks in range(16): items.append(dict(pre=setw(lo,4*MB) if ks==0 else [], so=(None,32*ks*8192,(32*ks+16)*8192), dst=(k,b+8*ks)))
    L,_=autowait(wload(items)); A.ext(L)
    AC=48
    acc=lambda m,t,s: AC+16*"KVQ".index(m)+8*t+4*s
    def mf(ks,t,x):
        o=[]
        for m in "KQV":
            k,b,_=W[m]
            for s in (0,1):
                w=vr(b+8*ks+4*s,4,k); d=acc(m,t,s); c=None if ks==0 else d
                o.append(m32(d,x,w,c) if m=="V" else m32(d,w,x,c))
        return o
    PK=96
    sc="sc1" if flags else ""
    epi=[f"s_lshl_b32 {sA}, {sSEG}, 5", f"s_add_u32 {sA}, {sA}, {sH}", f"s_lshl_b32 {sA}, {sA}, 2", f"s_add_u32 {sA}, {sA}, {sW}",
         f"s_lshl_b32 {sB}, {sA}, 11", f"s_add_u32 {sB}, {sB}, {WS_Q}", f"s_lshl_b32 {sA}, {sA}, 12"]
    def frag(dst,a0,a1): return [pk(dst,a0,a0+1),pk(dst+1,a0+2,a0+3),pk(dst+2,a1,a1+1),pk(dst+3,a1+2,a1+3)]
    for t in (0,1):
        epi+=frag(PK+4*t,acc("K",t,0),acc("K",t,1))+[f"buffer_store_dwordx4 {vr(PK+4*t,4)}, v{vL16}, {WS}, {sA} offen offset:{1024*t} {sc}"]
    for t in (0,1):
        epi+=frag(PK+8+4*t,acc("Q",t,0),acc("Q",t,1))+[f"buffer_store_dwordx4 {vr(PK+8+4*t,4)}, v{vL16}, {WS}, {sB} offen offset:{1024*t}"]
    for s in (0,1):
        epi+=frag(PK+16+4*s,acc("V",0,s),acc("V",1,s))+[f"buffer_store_dwordx4 {vr(PK+16+4*s,4)}, v{vL16}, {WS}, {sA} offen offset:{2048+1024*s} {sc}"]
    sig=[f"s_lshl_b32 {sG}, {sF}, 2", f"s_sub_u32 {sG}, {sG}, {4-DB_KV}", "s_mov_b64 exec, 1", f"buffer_atomic_add v{vONE}, v{vZ}, {DBG}, {sG} offen sc1", "s_mov_b64 exec, -1"] if flags else None
    stream(A,"P1",7,mf,epi,6,sig)
def P2(A, flags):
    A(f"""s_cmp_ge_u32 {sT}, 220
    s_cbranch_scc1 P2_end
    s_mul_i32 {sC}, {sT}, 3277
    s_lshr_b32 {sC}, {sC}, 16
    s_mul_i32 {sA}, {sC}, 20
    s_sub_u32 {sSEG}, {sT}, {sA}
    s_lshl_b32 {sC}, {sC}, 2
    s_add_u32 {sC}, {sC}, {sW}
    s_min_u32 {sC}, {sC}, 42
    s_mov_b32 {sXB}, {XB0}""")
    A.ext(xdma(sSEG))
    A(f"s_lshl_b32 {sA}, {sC}, 6")
    wvoff(A, 2752, False, sA)
    items=[]
    for mi in (0,1):
        for ks in range(16): items.append(dict(pre=setw(48+2*mi,512*2752) if ks==0 else [], so=(None,32*ks*2752,(32*ks+16)*2752), dst=("a",128*mi+8*ks)))
    L,_=autowait(wload(items)); A.ext(L)
    AC=48
    def mf(ks,t,x):
        return [m32(AC+16*mi+8*t+4*s, vr(128*mi+8*ks+4*s,4,"a"), x, None if ks==0 else AC+16*mi+8*t+4*s) for mi in (0,1) for s in (0,1)]
    PK=96
    epi=[f"s_mul_i32 {sA}, {sSEG}, 86", f"s_add_u32 {sA}, {sA}, {sC}", f"s_lshl_b32 {sA}, {sA}, 10", f"s_add_u32 {sA}, {sA}, {WS_H}", f"s_add_u32 {sB}, {sA}, {43*1024}"]
    for t in (0,1):
        a=AC+8*t
        epi+=[f"v_mul_f32 v{a+r}, v{a+r}, v{a+16+r}" for r in range(8)]+[pk(PK+4*t+r,a+2*r,a+2*r+1) for r in range(4)]
        epi+=[f"buffer_store_dwordx4 {vr(PK+4*t,4)}, v{vL16}, {WS}, {(sA,sB)[t]} offen {'sc1' if flags else ''}"]
    stream(A,"P2",20,mf,epi,2,None)
    if flags: A(f"s_mov_b64 exec, 1\n buffer_atomic_add v{vONE}, v{vZ}, {DBG}, 0 offen offset:{DB_H} sc1\n s_mov_b64 exec, -1")
    A("P2_end:")
sMASK=60
sCS="s76"
ONES=240; HALF=244; NINF=246
def P3init(A):
    A(f"""v_and_b32 v{vt}, 15, v0
    v_lshrrev_b32 v{vt+1}, 4, v0
    v_lshlrev_b32 v{vt+1}, 2, v{vt+1}
    v_sub_u32 v{vt}, v{vt}, v{vt+1}
    s_lshr_b32 {sA}, {sW}, 1
    s_lshl_b32 {sA}, {sA}, 4
    v_add_u32 v{vt}, {sA}, v{vt}
    s_mov_b32 {sCS}, 0x3e0293ee
    v_mov_b32 v{NINF}, 0xff800000""")
    for tk in (0,1):
        for r in range(4): A(f"v_cmp_le_i32 s[{sMASK+8*tk+2*r}:{sMASK+8*tk+2*r+1}], {16*tk+r}, v{vt}")
    for k in range(4): A(f"v_mov_b32 v{ONES+k}, 0x3f803f80")
    for k in range(2): A(f"v_mov_b32 v{HALF+k}, 0x3f003f00")
Q3=16; KX3=32; VX3=64; KM3=80; VM3=96; S3=104; P3r=116; O3=124; L3=140
def P3pre(seg):
    L=[f"s_lshl_b32 {sA}, {seg}, 5", f"s_add_u32 {sA}, {sA}, {sH}", f"s_lshl_b32 {sB}, {sA}, 13", f"s_add_u32 {sB}, {sB}, {WS_Q}", f"s_lshl_b32 {sA}, {sA}, 14",
       f"s_lshr_b32 {sC}, {sW}, 1", f"s_lshl_b32 {sC}, {sC}, 10", f"s_add_u32 {sB}, {sB}, {sC}"]
    for w in range(4):
        L+=[f"s_add_u32 {sG}, {sB}, {2048*w}", f"buffer_load_dwordx4 {vr(Q3+4*w,4)}, v{vL16}, {WS}, {sG} offen",
            f"s_add_u32 {sG}, {sA}, {4096*w}"]+[f"buffer_load_dwordx4 {vr(KX3+16*tk+4*w,4)}, v{vL16}, {WS}, {sG} offen offset:{1024*tk}" for tk in (0,1)]
    L+=[f"s_and_b32 {sC}, {sW}, 1", f"s_lshl_b32 {sC}, {sC}, 13", f"s_add_u32 {sA}, {sA}, {sC}"]
    for k in (0,1):
        L+=[f"s_add_u32 {sG}, {sA}, {4096*k}"]+[f"buffer_load_dwordx4 {vr(VX3+8*k+4*s,4)}, v{vL16}, {WS}, {sG} offen offset:{2048+1024*s}" for s in (0,1)]
    return L
def P3x():
    L=[]
    for tk in (0,1):
        for w in range(4): L.append(m32(S3+4*tk, vr(KX3+16*tk+4*w,4), vr(Q3+4*w,4), None if w==0 else S3+4*tk))
    return L
def P3post(seg, sc):
    L=[f"s_lshl_b32 {sA}, {seg}, 5", f"s_add_u32 {sA}, {sA}, {sH}", f"s_lshl_b32 {sA}, {sA}, 13", f"s_add_u32 {sA}, {sA}, {WS_KM}"]
    for w in range(4): L+=[f"s_add_u32 {sG}, {sA}, {2048*w}", f"buffer_load_dwordx4 {vr(KM3+4*w,4)}, v{vL16}, {WS}, {sG} offen {sc}"]
    L+=[f"s_and_b32 {sC}, {sW}, 1", f"s_lshl_b32 {sC}, {sC}, 12", f"s_add_u32 {sA}, {sA}, {sC}"]
    for k in (0,1): L+=[f"buffer_load_dwordx4 {vr(VM3+4*k,4)}, v{vL16}, {WS}, {sA} offen offset:{1024+2048*k} {sc}"]
    L+=P3x()
    for k in range(8): L.append(f"v_cndmask_b32 v{S3+k}, v{NINF}, v{S3+k}, s[{sMASK+2*k}:{sMASK+2*k+1}]")
    m,t=vt,vt+1
    L+=[f"v_max3_f32 v{m}, v{S3}, v{S3+1}, v{S3+2}", f"v_max3_f32 v{t}, v{S3+3}, v{S3+4}, v{S3+5}", f"v_max3_f32 v{m}, v{m}, v{S3+6}, v{S3+7}"]
    for w in range(4): L.append(m32(S3+8, vr(KM3+4*w,4), vr(Q3+4*w,4), None if w==0 else S3+8))
    L+=[f"v_max3_f32 v{t}, v{t}, v{S3+8}, v{S3+9}", f"v_max3_f32 v{m}, v{m}, v{S3+10}, v{S3+11}", f"v_max_f32 v{m}, v{m}, v{t}",
        f"v_mov_b32 v{t}, v{m}", f"v_permlane32_swap_b32 v{m}, v{t}", f"v_max_f32 v{m}, v{m}, v{t}",
        f"v_mov_b32 v{t}, v{m}", f"v_permlane16_swap_b32 v{m}, v{t}", f"v_max_f32 v{m}, v{m}, v{t}", f"v_mul_f32 v{m}, {sCS}, v{m}"]
    L+=[f"v_fma_f32 v{S3+k}, v{S3+k}, {sCS}, -v{m}" for k in range(12)]+[f"v_exp_f32 v{S3+k}, v{S3+k}" for k in range(12)]
    L+=[pk(P3r+k,S3+2*k,S3+2*k+1) for k in range(6)]
    L+=[m32(L3,vr(ONES,4),vr(P3r,4))]+[m32(O3+4*k,vr(VX3+4*k,4),vr(P3r,4)) for k in range(4)]
    L+=[m16(L3,vr(HALF,2),vr(P3r+4,2),L3)]+[m16(O3+4*k,vr(VM3+2*k,2),vr(P3r+4,2),O3+4*k) for k in range(4)]
    L+=[f"s_lshl_b32 {sA}, {seg}, 1", f"s_lshr_b32 {sC}, {sW}, 1", f"s_add_u32 {sA}, {sA}, {sC}", f"s_lshl_b32 {sA}, {sA}, 5", f"s_add_u32 {sA}, {sA}, {sH}",
        f"s_lshl_b32 {sA}, {sA}, 1", f"s_and_b32 {sC}, {sW}, 1", f"s_add_u32 {sA}, {sA}, {sC}", f"s_lshl_b32 {sA}, {sA}, 11", f"s_add_u32 {sA}, {sA}, {WS_O}"]
    L+=[f"v_rcp_f32 v{m}, v{L3}"]+[f"v_mul_f32 v{O3+k}, v{O3+k}, v{m}" for k in range(16)]
    for k in (0,1):
        L+=[pk(S3+4*k+r,O3+8*k+2*r,O3+8*k+2*r+1) for r in range(4)]+[f"buffer_store_dwordx4 {vr(S3+4*k,4)}, v{vL16}, {WS}, {sA} offen offset:{1024*k} {sc}"]
    return L
sCB="s58"; sRG4="s59"; sRED="s77"; sBB="s78"
RG=16; A4=80; WD=104; GW=192; vRED=248; vOO=249; vBB=250
LDS_RED=0x20000; LDS_BB=0x8000*0+0x10000
def ring(items, depth=16):
    L=[]; n=len(items)
    for i in range(min(depth,n)): L+=items[i][0](RG+4*(i%depth))
    for i in range(n):
        L+=items[i][1](vr(RG+4*(i%depth),4))
        if i>=1 and i-1+depth<n: L+=items[i-1+depth][0](RG+4*((i-1)%depth))
    return L
def P4init(A):
    A(f"""s_and_b32 {sCB}, {sT}, 15
    s_lshr_b32 {sRG4}, {sT}, 4
    s_lshl_b32 {sA}, {sCB}, 6""")
    wvoff(A, 1024, True, sA)
    items=[]
    for k in range(11):
        pre=setw(52,1376*1024) if k==0 else []
        pre+=[f"s_mul_i32 {sC}, {sW}, 11", f"s_add_u32 {sC}, {sC}, {k}", f"s_min_u32 {sC}, {sC}, 42", f"s_lshl_b32 {sC}, {sC}, 15"]
        items.append(dict(pre=pre, so=(sC,0,8192), dst=("v",WD+8*k)))
    for k in range(32):
        pre=setw(46,4*MB)+[f"s_lshl_b32 {sD}, {sW}, 20"] if k==0 else []
        items.append(dict(pre=pre, so=(sD,k*32768,k*32768+8192), dst=("a",8*k)))
    L=[f"v_lshrrev_b32 v{vt}, 4, v0", f"v_lshlrev_b32 v{vt}, 4, v{vt}", f"s_lshl_b32 {sA}, {sW}, 8", f"v_add_u32 v{vt}, {sA}, v{vt}"]
    L+=[f"global_load_dwordx4 {vr(GW+4*k,4)}, v{vt}, s[54:55] offset:{64*k}" for k in range(4)]
    L,_=autowait(L+wload(items)); A.ext(L)
    A(f"""s_waitcnt vmcnt(0) lgkmcnt(0)
    s_cmp_lg_u32 {sW}, 3
    s_cbranch_scc1 P4_nz""")
    for k in range(8): A(f"v_mov_b32 v{WD+80+k}, 0")
    A(f"""P4_nz:
    s_lshl_b32 {sA}, {sW}, 10
    v_add_u32 v{vRED}, {sA}, v{vL16}
    v_and_b32 v{vt}, 15, v0
    v_lshlrev_b32 v{vt}, 10, v{vt}
    v_lshrrev_b32 v{vt+1}, 4, v0
    v_lshl_add_u32 v{vOO}, v{vt+1}, 3, v{vt}
    s_lshl_b32 {sA}, {sW}, 11
    s_add_u32 {sA}, {sA}, 0x10000
    v_add_u32 v{vBB}, {sA}, v{vL16}
    s_barrier""")
def reduce4(extra_w=[], extra_r=[]):
    L=[f"ds_write_b128 v{vRED}, {vr(A4+4*k,4)} offset:{4096*k}" for k in range(4)]+extra_w
    L+=[f"s_mul_i32 {sA}, {sW}, 3072", f"v_add_u32 v{vt}, {sA}, v{vRED}", "s_waitcnt lgkmcnt(0)", "s_barrier"]
    L+=[f"ds_read_b128 {vr(A4+4*k,4)}, v{vt} offset:{1024*k}" for k in range(4)]+extra_r
    L+=[f"v_xor_b32 v{vRED}, 0x8000, v{vRED}"]
    for r in range(4): L+=[f"v_add_f32 v{A4+r}, v{A4+r}, v{A4+4+r}", f"v_add_f32 v{A4+8+r}, v{A4+8+r}, v{A4+12+r}"]
    for r in range(4): L+=[f"v_add_f32 v{A4+r}, v{A4+r}, v{A4+8+r}"]
    return L
def P4b(A, sc):
    A(f"s_mov_b32 {sSEG}, {sRG4}\n v_mov_b32 v{vt+5}, v{vBB}\n P4b_top:")
    Z=A4+16
    it=[]
    for kk in range(4):
        for t in (0,1):
            it.append((lambda r,kk=kk,t=t: [f"s_add_u32 {sG}, {sE}, {t*16384+kk*64}", f"buffer_load_dwordx4 {vr(r,4)}, v{vXO}, {XS}, {sG} offen"],
                       lambda x,kk=kk,t=t: [m32(Z+4*t, vr(GW+4*kk,4), x, None if kk==0 else Z+4*t)]))
    for k in range(11):
        for t in (0,1):
            it.append((lambda r,k=k,t=t: [f"s_add_u32 {sG}, {sF if k<10 else sD}, {t*43*1024+(k*1024 if k<10 else 0)}", f"buffer_load_dwordx4 {vr(r,4)}, v{vL16}, {WS}, {sG} offen {sc}"],
                       lambda x,k=k,t=t: [m32(A4+8*t+4*s, vr(WD+8*k+4*s,4), x, None if k==0 else A4+8*t+4*s) for s in (0,1)]))
    L=[f"s_lshl_b32 {sE}, {sSEG}, 15", f"s_mul_i32 {sA}, {sSEG}, 86", f"s_mul_i32 {sB}, {sW}, 11", f"s_add_u32 {sC}, {sB}, 10", f"s_min_u32 {sC}, {sC}, 42",
       f"s_add_u32 {sF}, {sA}, {sB}", f"s_lshl_b32 {sF}, {sF}, 10", f"s_add_u32 {sF}, {sF}, {WS_H}", f"s_add_u32 {sD}, {sA}, {sC}", f"s_lshl_b32 {sD}, {sD}, 10", f"s_add_u32 {sD}, {sD}, {WS_H}"]
    L+=ring(it)
    zw=[f"s_mul_i32 {sA}, {sW}, 1020", f"v_subrev_u32 v{vt+1}, {sA}, v{vRED}"]+[f"ds_write_b32 v{vt+1}, v{Z+4*t} offset:{0x4000+1024*t}" for t in (0,1)]+\
       [f"s_lshr_b32 {sB}, {sW}, 1", f"s_sub_u32 {sB}, {sB}, {sW}", f"s_lshl_b32 {sB}, {sB}, 10", f"v_add_u32 v{vt+2}, {sB}, v{vRED}"]
    zr=[f"ds_read_b128 {vr(Z,4)}, v{vt+2} offset:{0x4000}"]
    L+=reduce4(zw,zr)
    L+=[f"v_add_f32 v{Z}, v{Z}, v{Z+1}", f"v_add_f32 v{Z+2}, v{Z+2}, v{Z+3}", f"v_add_f32 v{Z}, v{Z}, v{Z+2}", f"v_mul_f32 v{Z}, 0xbfb8aa3b, v{Z}", f"v_exp_f32 v{Z}, v{Z}",
        f"v_add_f32 v{Z}, 1.0, v{Z}", f"v_rcp_f32 v{Z}, v{Z}", f"v_sub_f32 v{Z+1}, 1.0, v{Z}"]+[f"v_mul_f32 v{A4+r}, v{A4+r}, v{Z+1}" for r in range(4)]
    L+=[f"ds_write_b128 v{vt+5}, {vr(A4,4)}", f"ds_write_b32 v{vt+5}, v{Z} offset:1024", f"v_add_u32 v{vt+5}, 0x2000, v{vt+5}"]
    L,_=autowait(L); A.ext(L)
    A(f"s_add_u32 {sSEG}, {sSEG}, 14\n s_cmp_lt_u32 {sSEG}, 64\n s_cbranch_scc1 P4b_top")
def P4a(seg, sc):
    it=[]
    for k in range(32):
        for t in (0,1):
            it.append((lambda r,k=k,t=t: ([f"s_add_u32 {sG}, {sE}, {(k>>2)*4096}", f"s_add_u32 {sF}, {sG}, {128*1024}"] if (k&3)==0 and t==0 else [])+[f"buffer_load_dwordx4 {vr(r,4)}, v{vL16}, {WS}, {(sG,sF)[t]} offen offset:{(k&3)*1024} {sc}"],
                       lambda x,k=k,t=t: [m32(A4+8*t+4*s, vr(8*k+4*s,4,"a"), x, None if k==0 else A4+8*t+4*s) for s in (0,1)]))
    L=[f"s_lshl_b32 {sE}, {seg}, 18", f"s_lshl_b32 {sA}, {sW}, 15", f"s_add_u32 {sE}, {sE}, {sA}", f"s_add_u32 {sE}, {sE}, {WS_O}"]
    L+=ring(it)
    B=A4+16
    L+=reduce4([],[f"ds_read_b128 {vr(B,4)}, v{vBB}", f"ds_read_b32 v{B+4}, v{vBB} offset:1024"])
    L+=[f"v_add_u32 v{vBB}, 0x2000, v{vBB}", f"s_lshl_b32 {sA}, {seg}, 15", f"s_lshr_b32 {sB}, {sW}, 1", f"s_lshl_b32 {sB}, {sB}, 14", f"s_add_u32 {sA}, {sA}, {sB}",
        f"s_lshl_b32 {sB}, {sCB}, 6", f"s_add_u32 {sA}, {sA}, {sB}", f"s_and_b32 {sB}, {sW}, 1", f"s_lshl_b32 {sB}, {sB}, 5", f"s_add_u32 {sA}, {sA}, {sB}"]
    L+=[f"v_fma_f32 v{A4+r}, v{A4+r}, v{B+4}, v{B+r}" for r in range(4)]+[pk(A4,A4,A4+1),pk(A4+1,A4+2,A4+3), f"buffer_store_dwordx2 {vr(A4,2)}, v{vOO}, {OUT}, {sA} offen"]
    return L
def entry(A,name):
    A.ext(khdr(name))
    A(f"s_and_b32 s3, s2, 7\n s_cmp_eq_u32 s3, 0\n s_cbranch_scc1 {name}_x\n s_cmp_ge_u32 s2, 256\n s_cbranch_scc1 {name}_x")
    setup(A)
def hrg(A):
    A(f"s_mul_i32 {sH}, {sT}, 9363\n s_lshr_b32 {sH}, {sH}, 16\n s_mul_i32 {sA}, {sH}, 7\n s_sub_u32 {sRG}, {sT}, {sA}")
def k_gemm(name="k1_kernel"):
    A=Asm(); entry(A,name); P1(A,False); P2(A,False); A(f"{name}_x:\n s_endpgm"); return A.finish()+kdesc(name,512,256)
def k_attn(name="k3_kernel"):
    A=Asm(); entry(A,name); hrg(A); P3init(A)
    A(f"s_mov_b32 {sSEG}, {sRG}\n P3_top:")
    L,_=autowait(P3pre(sSEG)+P3post(sSEG,"")); A.ext(L)
    A(f"s_add_u32 {sSEG}, {sSEG}, 7\n s_cmp_lt_u32 {sSEG}, 64\n s_cbranch_scc1 P3_top\n {name}_x:\n s_endpgm"); return A.finish()+kdesc(name,512,256)
def k_out(name="k4_kernel"):
    A=Asm(); entry(A,name); P4init(A); P4b(A,"")
    A(f"s_mov_b32 {sSEG}, {sRG4}\n P4a_top:")
    L,_=autowait(P4a(sSEG,"")); A.ext(L)
    A(f"s_add_u32 {sSEG}, {sSEG}, 14\n s_cmp_lt_u32 {sSEG}, 64\n s_cbranch_scc1 P4a_top\n {name}_x:\n s_endpgm"); return A.finish()+kdesc(name,512,256)
HDR='.amdgcn_target "amdgcn-amd-amdhsa--gfx950"\n.text\n'
if __name__=="__main__":
    import sys
    for n,f in (("k1",k_gemm),("k3",k_attn),("k4",k_out)): open(f"../exp/{sys.argv[1]}_{n}.s","w").write(HDR+f())
```

```python
from asmlib import *
WS_KV   = 0
WS_KM   = 32 << 20
WS_MEM  = 48 << 20
WS_IN   = (48 << 20) + (1 << 19)
WS_DBG  = 50 << 20
vIDX=1; SEL0=2; SEL1=4; ONESM=6; RSEL=8; ONES=12; SENT=16
aX=20; aR=[21,22,23]; aW=24; aKV=25; aT=26; aP=27; aPUB=28; vTCH=29; vT0=30; vT1=31
X=32; KV=64; RING=80; P=104
vRES=144
def vr(b,n=1): return f"v{b}" if n==1 else f"v[{b}:{b+n-1}]"
SRD="s[8:11]"; sMC="s12"; sMN="s13"; sIC="s14"; sIO="s15"; sP0="s16"; sP1="s17"; sKV="s18"; sKN="s19"; sKM="s20"
sSTEP="s21"; sH="s22"; sW="s23"; sSPIN="s24"; sLO8="s[26:27]"; sLOH="s[28:29]"; sC="s30"
WSRD="s[32:35]"
OPT=set()
LDS_EX=8192; LDS_W=16384

def qkv_order():
    o=[]
    for m in "QK":
        for j in (0,1):
            for s in (0,1): o.append((m,j,s))
    for m in "QK":
        for j in range(2,8):
            for s in (0,1): o.append((m,j,s))
    for j in range(8):
        for s in (0,1): o.append(("V",j,s))
    return o
def wo_order():
    return [("O",u,jj,t) for u in (0,1) for jj in range(4) for t in (0,1)]
RINGPOS=[8,12,16,20,24,28,32,36,40,44,47]
WOLDS=[3,5,7,9,11,13,15]
def placement():
    loc={}; na=nv=nl=0
    q=qkv_order(); w=wo_order()
    for i,k in enumerate(q):
        if i in RINGPOS: loc[k]=("l",nl); nl+=1
    for i,k in enumerate(w):
        if i in WOLDS: loc[k]=("l",nl); nl+=1
    for k in q+w:
        if k in loc: continue
        if na<32: loc[k]=("a",8*na); na+=1
        else: loc[k]=("v",vRES+8*nv); nv+=1
    assert nl==18 and nv==14
    return loc
LOC=placement()

def prologue(A, bounded):
    A(f"""
    v_lshrrev_b32 v2, 6, v0
    v_and_b32 v0, 63, v0
    s_lshr_b32 {sH}, s2, 3
    v_readfirstlane_b32 {sW}, v2
    s_load_dwordx2 s[8:9], s[0:1], 112
    s_load_dwordx2 s[36:37], s[0:1], 104
    s_load_dwordx2 s[38:39], s[0:1], 8
    s_load_dwordx8 s[40:47], s[0:1], 16
    s_mov_b32 s10, 0x10000000
    s_mov_b32 s11, 0x20000
    s_mov_b32 s34, 0x400000
    s_mov_b32 s35, 0x20000
    v_and_b32 v2, 15, v0
    v_lshrrev_b32 v3, 4, v0
    """)
    A(f"""
    s_lshl_b32 s48, {sW}, 11
    v_lshlrev_b32 v4, 4, v0
    v_add_u32 v{aX}, s48, v4
    """)
    for k in range(3):
        A(f"""
        s_add_u32 s49, {sW}, {k+1}
        s_and_b32 s49, s49, 3
        s_lshl_b32 s49, s49, 11
        v_add_u32 v{aR[k]}, s49, v4""")
    A(f"""
    s_mul_i32 s49, {sW}, {18*2048}
    s_add_u32 s49, s49, {LDS_W}
    v_add_u32 v{aW}, s49, v4
    s_lshl_b32 s49, {sW}, 12
    v_add_u32 v{aKV}, s49, v4
    v_lshlrev_b32 v5, 6, v0
    v_add_u32 v{aT}, s49, v5
    """)
    A(f"""
    s_lshl_b32 s49, {sW}, 16
    v_lshlrev_b32 v5, 13, v3
    v_add_u32 v5, s49, v5
    v_lshrrev_b32 v6, 2, v2
    v_lshl_add_u32 v5, v6, 11, v5
    v_and_b32 v6, 3, v2
    v_lshl_add_u32 v{aP}, v6, 4, v5
    s_lshr_b32 s49, {sH}, 1
    s_lshl_b32 s49, s49, 6
    s_and_b32 s50, {sH}, 1
    s_lshl_b32 s51, s50, 15
    s_add_u32 {sP0}, s49, s51
    s_add_u32 {sP0}, {sP0}, {WS_IN}
    s_xor_b32 {sP1}, {sP0}, {32768+1024}
    s_lshl_b32 {sIC}, {sH}, 13
    s_add_u32 {sIC}, {sIC}, {WS_IN}
    s_xor_b32 {sIO}, {sIC}, {1<<18}
    s_mov_b32 {sMC}, {WS_MEM}
    s_mov_b32 {sMN}, {WS_MEM+8192}
    s_lshl_b32 {sKV}, {sH}, 14
    s_add_u32 {sKN}, {sKV}, {1<<19}
    s_lshl_b32 {sKM}, {sH}, 13
    s_add_u32 {sKM}, {sKM}, {WS_KM}
    s_mov_b32 {sSTEP}, 0
    s_mov_b32 s26, 0x00ff00ff
    s_mov_b32 s27, 0x00ff00ff
    s_mov_b32 s28, -1
    s_mov_b32 s29, 0
    s_mov_b32 {sC}, 0x3e0293ee
    """)
    A(f"""
    s_lshr_b32 s49, {sH}, 1
    s_lshl_b32 s49, s49, 2
    s_add_u32 s49, s49, {sW}
    s_lshl_b32 s49, s49, 7
    s_lshl_b32 s50, s50, 6
    s_add_u32 s49, s49, s50
    v_bfe_u32 v5, v0, 1, 2
    v_lshlrev_b32 v5, 4, v5
    v_and_b32 v6, 1, v3
    v_lshl_add_u32 v5, v6, 3, v5
    v_lshrrev_b32 v6, 1, v3
    v_lshl_add_u32 v5, v6, 2, v5
    v_add_u32 v{aPUB}, s49, v5
    """)
    for k in range(4): A(f"v_mov_b32 v{SENT+k}, -1")
    A("s_waitcnt lgkmcnt(0)")
    for so in (sIC, sIO):
        for o in (0,1024): A(f"buffer_store_dwordx4 {vr(SENT,4)}, v{aX}, {SRD}, {so} offen offset:{o} sc1")
    for so in (sMC, sMN): A(f"buffer_store_dword v{SENT}, v{aPUB}, {SRD}, {so} offen sc1")
    A(f"""
    s_waitcnt vmcnt(0)
    s_barrier
    s_cmp_lg_u32 {sW}, 0
    s_cbranch_scc1 L_noarr
    s_getreg_b32 s49, hwreg(HW_REG_XCC_ID)
    s_and_b32 s49, s49, 7
    s_lshl_b32 s49, s49, 3
    s_lshl_b64 s[50:51], 1, s49
    v_mov_b32 v6, s50
    v_mov_b32 v7, s51
    v_mov_b32 v5, 0
    s_mov_b64 exec, 1
    global_atomic_add_x2 v5, v[6:7], s[36:37] offset:248 sc1
    s_mov_b64 exec, -1
    L_noarr:
    """)
    A(f"""
    v_lshrrev_b32 v5, 1, v3
    v_and_b32 v6, 1, v3
    v_lshlrev_b32 v7, 17, v5
    v_lshl_add_u32 v7, v6, 15, v7
    s_lshl_b32 s49, {sH}, 8
    s_lshl_b32 s50, {sW}, 6
    s_add_u32 s49, s49, s50
    v_add_u32 v7, s49, v7
    v_lshl_add_u32 v29, v2, 1, v7
    v_bfe_u32 v30, v2, 1, 1
    v_lshl_add_u32 v7, v30, 5, v7
    v_lshrrev_b32 v30, 2, v2
    v_lshl_add_u32 v7, v30, 3, v7
    v_and_b32 v30, 1, v2
    v_lshl_add_u32 v30, v30, 2, v7
    v_lshlrev_b32 v7, 12, v5
    v_lshl_add_u32 v7, v6, 11, v7
    v_lshl_add_u32 v7, v2, 2, v7
    s_lshl_b32 s49, {sH}, 17
    s_lshl_b32 s50, {sW}, 8
    s_add_u32 s49, s49, s50
    v_add_u32 v31, s49, v7
    s_mov_b32 s52, 0x05040100
    s_mov_b32 s53, 0x07060302
    s_and_b32 s54, {sH}, 1
    s_lshl_b32 s54, s54, 7
    """)
    batches=[(m,j) for m in "QK" for j in range(8)]+[("V",j,s_) for j in range(8) for s_ in (0,1)]+[("O",u,jj) for u in (0,1) for jj in range(4)]
    NB=3; ST=32; TMP=ST+16*NB+0
    def issue(bi):
        b=batches[bi]; st=ST+16*(bi%NB); L=[]
        mi="QKVO".index(b[0])
        if bi%8==0: L+= [f"s_mov_b32 s32, s{40+2*mi}", f"s_mov_b32 s33, s{41+2*mi}"]
        if b[0]!="O":
            L+=[f"s_lshl_b32 s49, {sW}, 1", f"s_add_u32 s49, s49, {b[1]}", "s_and_b32 s49, s49, 7", "s_lshl_b32 s49, s49, 19"]
            for D in range(8):
                for e in (0,1):
                    row=32*(D>>2)+8*(D&1)+2*((D>>1)&1)+e
                    if b[0]=="V":
                        L+=[f"s_add_u32 s50, s49, {row*8192}", f"buffer_load_ushort v{st+2*D+e}, v29, {WSRD}, s50 offen offset:{32*b[2]}"]
                    else:
                        L+=[f"s_add_u32 s50, s49, {row*8192}", f"buffer_load_dword v{st+2*D+e}, v30, {WSRD}, s50 offen"]
        else:
            L+=[f"s_add_u32 s49, {sW}, {b[2]}", "s_and_b32 s49, s49, 3", "s_lshl_b32 s49, s49, 15", f"s_xor_b32 s50, s54, {128*b[1]}", "s_add_u32 s49, s49, s50"]
            for D in range(8):
                for e in (0,1):
                    row=8*(D>>2)+((D>>1)&1)+16*e
                    L+=[f"s_add_u32 s50, s49, {row*1024+64*(D&1)}", f"buffer_load_dword v{st+2*D+e}, v31, {WSRD}, s50 offen"]
        return L
    def consume(bi):
        b=batches[bi]; st=ST+16*(bi%NB); L=[]
        for s in ((0,) if b[0]=="V" else (0,1)):
            kind,idx=LOC[b if b[0]=="V" else b+(s,)]
            dst = idx if kind=="v" else TMP+8*s
            for D in range(8): L.append(f"v_perm_b32 v{dst+D}, v{st+2*D+1}, v{st+2*D}, s{52+s}")
            if kind=="a":
                for D in range(8): L.append(f"v_accvgpr_write_b32 a{idx+D}, v{dst+D}")
            if kind=="l":
                L+=[f"ds_write_b128 v{aW}, {vr(dst,4)} offset:{idx*2048}", f"ds_write_b128 v{aW}, {vr(dst+4,4)} offset:{idx*2048+1024}"]
        return L
    L=[]
    for bi in range(NB): L+=issue(bi)
    for bi in range(len(batches)):
        L+=consume(bi)
        if bi+NB<len(batches): L+=issue(bi+NB)
    L,_=autowait(L); A.ext(L)
    A(f"""
    v_and_b32 v2, 15, v0
    v_lshrrev_b32 v3, 4, v0
    v_and_b32 v5, 7, v0
    v_mov_b32 v6, 0x4444
    v_mov_b32 v7, 0xeeee
    v_cndmask_b32 v{vIDX}, v7, v6, {sLO8}
    v_lshlrev_b32 v30, 2, v3
    v_sub_u32 v30, v5, v30
    v_mov_b32 v31, v5
    v_mov_b32 v29, 0x3f80
    v_mov_b32 v96, 0x3f800000
    """)
    def selgen(dst, src, add, n):
        for k in range(n):
            A(f"""v_cmp_eq_u32 vcc, {2*k-add}, v{src}
            v_cndmask_b32 v97, 0, v29, vcc
            v_cmp_eq_u32 vcc, {2*k+1-add}, v{src}
            v_cndmask_b32 v{dst+k}, v97, v96, vcc""")
    selgen(SEL0,30,0,2); selgen(SEL1,30,8,2); selgen(RSEL,31,0,4)
    for k in range(4): A(f"v_mov_b32 v{ONES+k}, 0x3f803f80")
    for k in range(2): A(f"v_cndmask_b32 v{ONESM+k}, 0, v{ONES}, {sLOH}")
    A(f"""
    v_lshlrev_b32 v30, 10, v31
    v_lshrrev_b32 v31, 3, v0
    v_lshl_add_u32 v30, v31, 4, v30
    s_lshl_b32 s49, {sW}, 8
    v_add_u32 v30, s49, v30
    global_load_dwordx4 {vr(X,4)}, v30, s[38:39]
    global_load_dwordx4 {vr(X+4,4)}, v30, s[38:39] offset:128
    s_waitcnt lgkmcnt(0)
    """)
    A.ext(ringload(0,0)+ringload(1,1)+ringload(2,2)+zero(P,24))
    A(f"""
    v_mov_b32 v30, 0
    s_mov_b32 {sSPIN}, 0
    L_hs:
    global_load_dwordx2 v[64:65], v30, s[36:37] offset:248 sc1
    s_waitcnt vmcnt(0)
    v_readfirstlane_b32 s50, v64
    v_readfirstlane_b32 s51, v65
    """)
    if bounded: A(f"s_add_u32 {sSPIN}, {sSPIN}, 1\n s_cmp_gt_u32 {sSPIN}, 0x100000\n s_cbranch_scc1 L_end")
    A(f"""
    s_add_u32 s49, s50, s51
    s_mul_i32 s49, s49, 0x01010101
    s_lshr_b32 s49, s49, 24
    s_cmp_lg_u32 s49, 32
    s_cbranch_scc1 L_hs
    s_or_b32 s49, s50, s51
    s_and_b32 s49, s49, 0x20202020
    s_waitcnt lgkmcnt(0)
    """)

def ringload(slot, ldsidx, base=None):
    b = RING+8*slot if base is None else base
    return [f"ds_read_b128 {vr(b,4)}, v{aW} offset:{ldsidx*2048}", f"ds_read_b128 {vr(b+4,4)}, v{aW} offset:{ldsidx*2048+1024}"]
def zero(b,n): return [f"v_mov_b64 {vr(b+k,2)}, 0" for k in range(0,n,2)]
def smf(acc,a,breg): return f"v_smfmac_f32_16x16x64_bf16 {vr(acc,4)}, {vr(a,4)}, {breg}, v{vIDX}"
def m32(d,a,b,c="0"): return f"v_mfma_f32_16x16x32_bf16 {vr(d,4)}, {vr(a,4)}, {vr(b,4)}, {c}"
def m16(d,a,b,c="0"): return f"v_mfma_f32_16x16x16_bf16 {vr(d,4)}, {vr(a,2)}, {vr(b,2)}, {c}"
def pk(d,a,b): return f"v_cvt_pk_bf16_f32 v{d}, v{a}, v{b}"
def fold(acc):
    return [f"v_permlane32_swap_b32 v{acc+r}, v{acc+4+r}" for r in range(4)] + [f"v_add_f32 v{acc+r}, v{acc+r}, v{acc+4+r}" for r in range(4)] + [pk(acc+4,acc,acc+1), pk(acc+5,acc+2,acc+3)]
def check8(b, t):
    return [f"v_max3_u32 v{t}, v{b}, v{b+1}, v{b+2}", f"v_max3_u32 v{t+1}, v{b+3}, v{b+4}, v{b+5}", f"v_max3_u32 v{t}, v{t}, v{b+6}, v{b+7}",
            f"v_max_u32 v{t}, v{t}, v{t+1}", f"v_cmp_eq_u32 vcc, -1, v{t}"]

def loop(A, tag, sc, bounded, dbg=False, prof=False):
    aQ,aK,aV,aO,qT=P,P+8,P+16,P+24,P+36
    ACC={"Q":aQ,"K":aK,"V":aV}
    spin = (lambda: [f"s_add_u32 {sSPIN}, {sSPIN}, 1", f"s_cmp_gt_u32 {sSPIN}, 0x200000", "s_cbranch_scc1 L_end"]) if bounded else (lambda: [])
    q=qkv_order()
    ringuse={p:i for i,p in enumerate(RINGPOS)}
    def qs(i):
        m,j,s=q[i]; kind,idx=LOC[q[i]]
        if kind=="l": b=vr(RING+8*(ringuse[i]%3),8)
        else: b=f"{kind}[{idx}:{idx+7}]"
        L=[smf(ACC[m]+4*s, X+4*j, b)]
        if kind=="l" and ringuse[i]+3<len(RINGPOS): L+=ringload(ringuse[i]%3, ringuse[i]+3)
        return L
    w=wo_order()
    wdst={}
    for n,p in enumerate(WOLDS): wdst[p] = X+8*n if n<4 else RING+8*(n-4)
    nd=[0]
    def dump(b,n):
        if not dbg: return []
        o=["s_nop 7","s_nop 7","s_waitcnt lgkmcnt(0)", f"v_lshlrev_b32 v{vTCH}, 2, v0", f"s_lshl_b32 s70, {sH}, 10", f"s_lshl_b32 s71, {sW}, 8", "s_add_u32 s70, s70, s71"]
        for k in range(n):
            o+=[f"s_add_u32 s71, s70, {WS_DBG+65536+nd[0]*32768}", f"buffer_store_dword v{b+k}, v{vTCH}, {SRD}, s71 offen"]; nd[0]+=1
        return ["s_waitcnt vmcnt(0)"]+o+["s_waitcnt vmcnt(0)"]
    def T(k): return [f"s_memtime s[{66+2*k}:{67+2*k}]"] if prof else []
    L=[f"{tag}_top:"]+T(0)
    L+=[f"{tag}_poll:"]+spin()
    L+=[f"buffer_load_dwordx4 {vr(X,4)}, v{aX}, {SRD}, {sMC} offen sc1", f"buffer_load_dwordx4 {vr(X+4,4)}, v{aX}, {SRD}, {sMC} offen offset:1024 sc1", "s_waitcnt vmcnt(0)"]
    L+=check8(X,vT0)+[f"s_cbranch_vccnz {tag}_poll"]
    L+=[f"{tag}_go:", "s_waitcnt vmcnt(0)"]+T(1)
    L+=[f"ds_write_b128 v{aX}, {vr(X,4)}", f"ds_write_b128 v{aX}, {vr(X+4,4)} offset:1024"]
    L+=qs(0)+qs(1)+["s_waitcnt lgkmcnt(0)","s_barrier"]+T(2)
    xr=[f"ds_read_b128 {vr(X+4*j,4)}, v{aR[j//2-1]} offset:{1024*(j&1)}" for j in range(2,8)]
    kv=[f"buffer_load_dwordx4 {vr(KV+4*k,4)}, v{aKV}, {SRD}, {sKV} offen offset:{1024*k} sc1" for k in range(4)]
    bg=[f"buffer_load_dword v{vTCH}, v{aT}, {SRD}, {sKN} offen sc1",
        f"buffer_store_dwordx4 {vr(SENT,4)}, v{aX}, {SRD}, {sIO} offen {sc}", f"buffer_store_dwordx4 {vr(SENT,4)}, v{aX}, {SRD}, {sIO} offen offset:1024 {sc}",
        f"buffer_store_dword v{SENT}, v{aPUB}, {SRD}, {sMN} offen {sc}"]
    L+=xr[:2]
    def seq(lo,hi,fill,per=2,lead=0):
        out=[]; f=list(fill)
        for n,i in enumerate(range(lo,hi)):
            g=qs(i); out+=g; k=per-(len(g)-1)
            if n>=lead:
                for _ in range(max(k,0)):
                    if f: out.append(f.pop(0))
        return out+f
    L+=seq(2,8,xr[2:]+kv+bg)
    L+=seq(8,20,[])
    qpost=fold(aQ)+[m16(aO,aQ+4,SEL0), m16(aO+4,aQ+4,SEL1)]
    L+=seq(20,28,qpost,lead=2)
    qpost2=[pk(qT+r,aO+r,aO+4+r) for r in range(4)]+[m32(aQ,KV,qT), m32(aQ+4,KV+4,qT)]
    L+=seq(28,32,qpost2,lead=1)
    sx=[f"v_cndmask_b32 v{aQ+r}, v{aQ+4+r}, v{aQ+r}, {sLO8}" for r in range(4)]+[f"ds_write_b128 v{aX}, {vr(aQ,4)} offset:{LDS_EX}"]
    kpost=fold(aK)+[m16(aO,aK+4,SEL0), m16(aO+4,aK+4,SEL1)]
    L+=seq(32,36,kpost,per=3,lead=1)
    L+=seq(36,38,sx,per=3)
    kT=aK+4
    L+=[pk(kT+r,aO+r,aO+4+r) for r in range(4)]+[m32(aK,kT,qT)]
    L+=seq(38,40,[f"buffer_store_dwordx4 {vr(kT,4)}, v{aX}, {SRD}, {sKM} offen {'' if 'kmplain' in OPT else 'sc1'}"])
    L+=[f"v_cndmask_b32 v{aK+r}, v{aK+2+r}, v{aK+r}, {sLO8}" for r in range(2)]+[f"ds_write_b64 v{aX}, {vr(aK,2)} offset:{LDS_EX+1024}"]
    L+=T(3)+seq(40,42,[])+["s_waitcnt lgkmcnt(0)","s_barrier"]+T(4)
    sr=[]
    for k in range(3): sr+=[f"ds_read_b128 {vr(aO+4*k,4)}, v{aR[k]} offset:{LDS_EX}", f"ds_read_b64 {vr(aQ+4+2*k if k<2 else aK+2,2)}, v{aR[k]} offset:{LDS_EX+1024}"]
    L+=sr[:2]+seq(42,48,sr[2:])
    wl=[]
    for p in WOLDS: wl+=ringload(0,LOC[w[p]][1],base=wdst[p])
    S=[aQ,aQ+1,aQ+2,aQ+3,aK,aK+1]
    for r in range(4): L+=[f"v_add_f32 v{aQ+r}, v{aQ+r}, v{aO+r}"]
    for r in range(2): L+=[f"v_add_f32 v{aK+r}, v{aK+r}, v{aQ+4+r}"]
    for r in range(4): L+=[f"v_add_f32 v{aO+4+r}, v{aO+4+r}, v{aO+8+r}"]
    for r in range(2): L+=[f"v_add_f32 v{aQ+6+r}, v{aQ+6+r}, v{aK+2+r}"]
    for r in range(4): L+=[f"v_add_f32 v{aQ+r}, v{aQ+r}, v{aO+4+r}"]
    for r in range(2): L+=[f"v_add_f32 v{aK+r}, v{aK+r}, v{aQ+6+r}"]
    m,t=vT0,vT1
    L+=dump(qT,4)+dump(aQ,4)+dump(aK,2)
    vf=fold(aV)
    vm=[f"v_cndmask_b32 v{aV+r}, 0, v{aV+4+r}, {sLOH}" for r in range(2)]+[f"v_cndmask_b32 v{aV+2+r}, v{aV+4+r}, 0, {sLOH}" for r in range(2)]+\
       [f"buffer_store_dwordx4 {vr(aV,4)}, v{aX}, {SRD}, {sKM} offen offset:1024 {'' if 'kmplain' in OPT else 'sc1'}"]
    fill=vf+vm+wl+zero(aO,16)
    def F(n):
        o=[]
        for _ in range(n):
            if fill: o.append(fill.pop(0))
        return o
    L+=[f"v_max3_f32 v{m}, v{S[0]}, v{S[1]}, v{S[2]}", f"v_max3_f32 v{m}, v{m}, v{S[3]}, v{S[4]}", f"v_max_f32 v{m}, v{m}, v{S[5]}"]+F(2)
    L+=[f"v_max_f32_dpp v{m}, v{m}, v{m} row_ror:8 row_mask:0xf bank_mask:0xf", f"v_mov_b32 v{t}, v{m}"]+F(2)
    L+=[f"v_permlane32_swap_b32 v{m}, v{t}"]+F(1)+[f"v_max_f32 v{m}, v{m}, v{t}", f"v_mov_b32 v{t}, v{m}"]+F(2)
    L+=[f"v_permlane16_swap_b32 v{m}, v{t}"]+F(1)+[f"v_max_f32 v{m}, v{m}, v{t}", f"v_mul_f32 v{m}, {sC}, v{m}"]
    for r in S: L+=[f"v_fma_f32 v{r}, v{r}, {sC}, -v{m}"]
    for r in S: L+=[f"v_exp_f32 v{r}, v{r}"]
    L+=F(7)
    Px=aQ+4; Pm=aK+2
    L+=[pk(Px,S[0],S[1]),pk(Px+1,S[2],S[3]),pk(Px+2,S[0],S[1]),pk(Px+3,S[2],S[3]),pk(Pm,S[4],S[5]),pk(Pm+1,S[4],S[5])]
    for r,bm in ((Px,"0xc"),(Px+1,"0xc"),(Px+2,"0x3"),(Px+3,"0x3"),(Pm,"0xc"),(Pm+1,"0x3")):
        L+=[f"v_mov_b32_dpp v{r}, v{r} row_ror:8 row_mask:0xf bank_mask:{bm}"]
    L+=dump(Px,4)+dump(Pm,2)
    L+=[f"s_cmp_eq_u32 {sSTEP}, 63", f"s_cbranch_scc1 L_end"]
    Ls,O0,O1=aQ,aK+4,aV+4
    L+=[m32(Ls,ONES,Px)]+F(2)+[m32(O0,KV+8,Px)]+F(2)+[m32(O1,KV+12,Px)]+F(2)+[m16(Ls,ONESM,Pm,vr(Ls,4))]+F(2)
    L+=[m16(O0,aV,Pm,vr(O0,4))]+F(2)+[m16(O1,aV+2,Pm,vr(O1,4))]+F(2)+[f"v_rcp_f32 v{m}, v{Ls}"]+F(99)
    for r in range(4): L+=[f"v_mul_f32 v{O0+r}, v{O0+r}, v{m}"]
    for r in range(4): L+=[f"v_mul_f32 v{O1+r}, v{O1+r}, v{m}"]
    oA=[KV,KV+4,KV+8,KV+12]
    L+=[pk(oA[0]+r,O0+r,O1+r) for r in range(4)]
    L+=dump(oA[0],4)+dump(m,1)
    L+=[f"ds_write_b128 v{aX}, {vr(oA[0],4)}"]
    def ws_(i):
        _,u,jj,t_=w[i]; kind,idx=LOC[w[i]]
        b = vr(wdst[i],8) if kind=="l" else f"{kind}[{idx}:{idx+7}]"
        return smf(aO+8*u+4*t_, oA[jj], b)
    L+=T(5)+[ws_(0),ws_(1),"s_waitcnt vmcnt(0) lgkmcnt(0)","s_barrier"]+T(6)
    L+=[f"ds_read_b128 {vr(oA[k+1],4)}, v{aR[k]}" for k in range(3)]
    L+=[ws_(8),ws_(9)]+[ws_(i) for i in range(2,8)]
    def part(u,dst,so):
        return [pk(dst+r,aO+8*u+r,aO+8*u+4+r) for r in range(4)]+[f"v_min_u32 v{dst+r}, -2, v{dst+r}" for r in range(4)]+\
               [f"buffer_store_dwordx4 {vr(dst,4)}, v{aP}, {SRD}, {so} offen {sc}"]
    L+=weave([ws_(i) for i in range(10,16)], part(0,aQ,sP0), per=3, lead=2)
    L+=part(1,aQ+4,sP1)
    L+=dump(aQ,8)+T(7)
    upd=[f"s_xor_b32 {sP0}, {sP0}, {1<<18}", f"s_xor_b32 {sP1}, {sP1}, {1<<18}", f"s_add_u32 {sKV}, {sKV}, {0 if 'kvfix' in OPT else 1<<19}", f"s_add_u32 {sKN}, {sKN}, {0 if 'kvfix' in OPT else 1<<19}",
         f"s_add_u32 {sKM}, {sKM}, {1<<18}", f"s_add_u32 {sSTEP}, {sSTEP}, 1"]
    L+=ringload(0,0)+ringload(1,1)+ringload(2,2)+upd+zero(aK,16)
    G=KV; R=aO
    L+=[f"{tag}_in:"]+spin()
    L+=[f"buffer_load_dwordx4 {vr(G,4)}, v{aX}, {SRD}, {sIC} offen sc1", f"buffer_load_dwordx4 {vr(G+4,4)}, v{aX}, {SRD}, {sIC} offen offset:1024 sc1", "s_waitcnt vmcnt(0)"]
    L+=[m32(R,G,RSEL), m32(R,G+4,RSEL,vr(R,4))]+check8(G,vT0)+[f"s_cbranch_vccnz {tag}_in"]+T(8)
    L+=[f"v_permlane32_swap_b32 v{R}, v{R+1}", f"v_permlane32_swap_b32 v{R+2}, v{R+3}", f"v_add_f32 v{R}, v{R}, v{R+1}", f"v_add_f32 v{R+2}, v{R+2}, v{R+3}",
        f"v_permlane16_swap_b32 v{R}, v{R+2}", f"v_add_f32 v{R}, v{R}, v{R+2}",
        f"v_mov_b32_dpp v{R+1}, v{R} quad_perm:[0,0,2,2] row_mask:0xf bank_mask:0xf", f"v_mov_b32_dpp v{R+2}, v{R} quad_perm:[1,1,3,3] row_mask:0xf bank_mask:0xf",
        pk(R,R+1,R+2), f"v_min_u32 v{R}, -2, v{R}", f"buffer_store_dword v{R}, v{aPUB}, {SRD}, {sMN} offen {sc}"]
    L+=dump(R,1)
    if dbg: L+=[f"s_cmp_eq_u32 {sSTEP}, {dbg}", "s_cbranch_scc1 L_end"]
    L+=[f"s_xor_b32 {sMC}, {sMC}, 8192", f"s_xor_b32 {sMN}, {sMN}, 8192", f"s_xor_b32 {sIC}, {sIC}, {1<<18}", f"s_xor_b32 {sIO}, {sIO}, {1<<18}"]+zero(aQ,8)
    L+=T(9)+["s_waitcnt lgkmcnt(0)"]
    if prof:
        L+=[f"s_cmp_lt_u32 {sSTEP}, 3", f"s_cbranch_scc1 {tag}_top"]
        for k in range(9): L+=[f"s_sub_u32 s{67+2*k}, s{68+2*k}, s{66+2*k}", f"s_add_u32 s{88+k}, s{88+k}, s{67+2*k}"]
    L+=[f"s_branch {tag}_top"]
    L,_=autowait(L); A.ext(L)

def gen(name="rec_kernel", bounded=True, force=None, dbg=False, prof=False, opt="", final=False):
    OPT.clear(); OPT.update(opt.split("+"))
    A=Asm()
    A.ext(khdr(name))
    A("s_and_b32 s3, s2, 7\n s_cmp_lg_u32 s3, 0\n s_cbranch_scc1 L_exit\n s_cmp_ge_u32 s2, 256\n s_cbranch_scc1 L_exit")
    prologue(A,bounded)
    A("s_cmp_eq_u32 s49, 0\n s_cbranch_scc1 S_go\n s_branch F_go")
    loop(A,"F","",bounded,dbg,prof); loop(A,"S","sc1",bounded,dbg,prof)
    A("L_end:\n s_waitcnt vmcnt(0) lgkmcnt(0)\n L_exit:\n s_endpgm")
    return A.finish()+kdesc(name,512,256)
```

```python
import par, rec1f
N="gated_mix__memory_aug_recurrent_mem_tr__glu_gated_bilinear__prompt"
ks=["k1_kernel","rec_kernel","k3_kernel","k4_kernel"]
hdr="".join(f"; @launch kernel={k} grid=(256,1,1) block=(256,1,1) lds=163840\n" for k in ks)
src=hdr+par.HDR+par.k_gemm()+rec1f.gen()+par.k_attn()+par.k_out()
open(f"../cdna_kernels/{N}.s","w").write(src)
```

```python
from asmlib import *
MB=1<<20
WS_KV=0; WS_KM=32*MB; WS_Q=64*MB; WS_O=80*MB; WS_H=96*MB
FL=49*MB
FL_KV=FL
FL_PR=FL+4096
FL_H=FL+8192
FL_O=FL+32768
SPIN=0x400000
def vr(b,n=1,k="v"): return f"{k}{b}" if n==1 else f"{k}[{b}:{b+n-1}]"
def m32(d,a,b,c=None): return f"v_mfma_f32_16x16x32_bf16 {vr(d,4)}, {a}, {b}, {'0' if c is None else vr(c,4)}"
def m16(d,a,b,c=None): return f"v_mfma_f32_16x16x16_bf16 {vr(d,4)}, {a}, {b}, {'0' if c is None else vr(c,4)}"
def pk(d,a,b): return f"v_cvt_pk_bf16_f32 v{d}, v{a}, v{b}"
WS="s[8:11]"; WT="s[32:35]"; XS="s[36:39]"; DBG="s[12:15]"; OUT="s[16:19]"
sW="s20"; sT="s21"; sSTG="s22"; sSEG="s23"; sA="s24"; sB="s25"; sC="s26"; sD="s27"; sXB="s28"; sE="s29"; sF="s30"; sG="s31"
vL=0; vL16=1; vTR0=2; vTR1=3; vWO=4; vXO=5; vXR=6; vZ=7; vONE=8; vt=9
def setup(A):
    A(f"""
    v_lshrrev_b32 v2, 6, v0
    v_and_b32 v0, 63, v0
    s_load_dwordx2 s[8:9], s[0:1], 112
    s_load_dwordx2 s[12:13], s[0:1], 104
    s_load_dwordx2 s[16:17], s[0:1], 96
    s_load_dwordx2 s[36:37], s[0:1], 0
    s_load_dwordx8 s[40:47], s[0:1], 16
    s_load_dwordx8 s[48:55], s[0:1], 64
    v_readfirstlane_b32 {sW}, v2
    s_mov_b32 s10, 0x10000000
    s_mov_b32 s11, 0x20000
    s_mov_b32 s14, 256
    s_mov_b32 s15, 0x20000
    s_mov_b32 s18, 0x200000
    s_mov_b32 s19, 0x20000
    s_mov_b32 s35, 0x20000
    s_mov_b32 s38, 0x200000
    s_mov_b32 s39, 0x20000
    s_and_b32 {sT}, s2, 7
    s_sub_u32 {sT}, {sT}, 1
    s_lshl_b32 {sT}, {sT}, 5
    s_lshr_b32 {sA}, s2, 3
    s_add_u32 {sT}, {sT}, {sA}
    s_lshl_b32 {sSTG}, {sW}, 15
    v_lshlrev_b32 v{vL16}, 4, v0
    v_mov_b32 v{vZ}, 0
    v_mov_b32 v{vONE}, 1
    """)
    A(f"""
    v_lshrrev_b32 v{vt}, 4, v0
    v_bfe_u32 v{vt+1}, v0, 2, 2
    v_lshl_add_u32 v{vt+1}, v{vt}, 3, v{vt+1}
    v_lshlrev_b32 v{vt+1}, 6, v{vt+1}
    v_and_b32 v{vt+2}, 3, v0
    v_lshl_add_u32 v{vt+1}, v{vt+2}, 3, v{vt+1}
    v_and_b32 v{vt+2}, 1, v{vt}
    v_lshl_add_u32 v{vt+1}, v{vt+2}, 5, v{vt+1}
    v_add_u32 v{vTR0}, {sSTG}, v{vt+1}
    v_xor_b32 v{vTR1}, 32, v{vTR0}
    v_and_b32 v{vt+1}, 15, v0
    v_lshlrev_b32 v{vt+1}, 10, v{vt+1}
    v_lshl_add_u32 v{vt+1}, v{vt}, 4, v{vt+1}
    s_lshl_b32 {sA}, {sW}, 8
    v_add_u32 v{vXO}, {sA}, v{vt+1}
    s_waitcnt lgkmcnt(0)
    """)
def wvoff(A, pitch, sigma, scol):
    A(f"v_lshrrev_b32 v{vt}, 2, v0")
    if sigma:
        A(f"""v_bfe_u32 v{vt+1}, v0, 4, 1
        v_lshlrev_b32 v{vt+1}, 4, v{vt+1}
        v_lshrrev_b32 v{vt+2}, 5, v0
        v_lshl_add_u32 v{vt+1}, v{vt+2}, 2, v{vt+1}
        v_and_b32 v{vt}, 3, v{vt}
        v_add_u32 v{vt}, v{vt}, v{vt+1}""")
    A(f"""v_mul_u32_u24 v{vt}, {pitch}, v{vt}
    v_lshrrev_b32 v{vt+1}, 5, v0
    v_lshlrev_b32 v{vt+1}, 1, v{vt+1}
    v_and_b32 v{vt+2}, 3, v0
    v_xor_b32 v{vt+1}, v{vt+1}, v{vt+2}
    v_lshl_add_u32 v{vt}, v{vt+1}, 4, v{vt}
    v_add_u32 v{vWO}, {scol}, v{vt}""")
def wload(items, depth=16):
    L=[]
    def issue(i):
        it=items[i]; o=list(it.get("pre",[])); sb,*im=it["so"]
        for hf in (0,1):
            o+=[f"s_add_u32 m0, {sSTG}, {(i%depth)*2048+hf*1024}",
                f"s_add_u32 {sG}, {sb}, {im[hf]}" if sb else f"s_mov_b32 {sG}, {im[hf]}",
                f"buffer_load_dwordx4 v{it.get('vo',vWO)}, {WT}, {sG} offen lds ;#w{i}"]
        return o
    n=len(items)
    for i in range(min(depth,n)): L+=issue(i)
    for i in range(n):
        k,r=items[i]["dst"]
        L+=[f"WAITV w{i}"]
        for s in (0,1):
            for hf in (0,1):
                L+=[f"ds_read_b64_tr_b16 {vr(r+4*s+2*hf,2,k)}, v{vTR0+s} offset:{(i%depth)*2048+256*hf} ;#r{i}"]
        if i>=1 and i-1+depth<n: L+=[f"WAITL r{i-1}"]+issue(i-1+depth)
    return L
def setw(lo, size): return [f"s_mov_b32 s32, s{lo}", f"s_mov_b32 s33, s{lo+1}", f"s_mov_b32 s34, {size}"]
def xdma(sseg):
    L=[f"s_lshl_b32 {sA}, {sseg}, 15", f"s_lshl_b32 {sB}, {sW}, 13", f"s_add_u32 {sB}, {sB}, {sXB}"]
    for kk in range(4):
        for t in (0,1):
            L+=[f"s_add_u32 m0, {sB}, {(kk*2+t)*1024}", f"s_add_u32 {sG}, {sA}, {t*16384+kk*64}", f"buffer_load_dwordx4 v{vXO}, {XS}, {sG} offen lds"]
    return L
XB0=0x20000
XR=16
def stream(A, tag, stride, mf, epi, nst, sig):
    A(f"""v_add_u32 v{vXR}, {XB0}, v{vL16}
    s_mov_b32 {sXB}, 0
    s_mov_b32 {sF}, 0
    s_waitcnt vmcnt(0) lgkmcnt(0)
    {tag}_top:
    s_waitcnt vmcnt({nst})
    s_barrier
    s_add_u32 {sE}, {sSEG}, {stride}
    s_min_u32 {sE}, {sE}, 63""")
    L=[]
    rd=lambda ks: [f"ds_read_b128 {vr(XR+8*(ks%4)+4*t,4)}, v{vXR} offset:{(2*ks+t)*1024}" for t in (0,1)]
    L+=rd(0)+rd(1)+rd(2)+xdma(sE)
    for ks in range(16):
        g=mf(ks,0,vr(XR+8*(ks%4),4))+mf(ks,1,vr(XR+8*(ks%4)+4,4))
        if ks+3<16: g=g[:1]+rd(ks+3)[:1]+g[1:2]+rd(ks+3)[1:]+g[2:]
        L+=g
        if ks==8 and sig:
            L+=["s_waitcnt vmcnt(8)", f"s_cmp_eq_u32 {sF}, 0", f"s_cbranch_scc1 {tag}_nosig"]+sig+[f"{tag}_nosig:"]
    L+=epi
    L,_=autowait(L); A.ext(L)
    A(f"""v_xor_b32 v{vXR}, {XB0}, v{vXR}
    s_xor_b32 {sXB}, {sXB}, {XB0}
    s_add_u32 {sF}, {sF}, 1
    s_add_u32 {sSEG}, {sSEG}, {stride}
    s_cmp_lt_u32 {sSEG}, 64
    s_cbranch_scc1 {tag}_top
    s_waitcnt vmcnt(0)""")
    if sig: A.ext(sig)
    A("s_barrier")
sH="s56"; sRG="s57"; sSP="s79"
vL4=251
def spin(): return [f"s_add_u32 {sSP}, {sSP}, 1", f"s_cmp_gt_u32 {sSP}, {SPIN}", "s_cbranch_scc1 L_exit"]
def handshake(A):
    A(f"s_mov_b32 {sSP}, 0\n P_hs:"); A.ext(spin())
    A(f"""buffer_load_dwordx2 v[{vt+1}:{vt+2}], v{vZ}, {DBG}, 0 offen offset:248 sc1
    s_waitcnt vmcnt(0)
    v_add_u32 v{vt}, v{vt+1}, v{vt+2}
    v_mul_lo_u32 v{vt}, v{vt}, v{vt+3}
    v_lshrrev_b32 v{vt}, 24, v{vt}
    v_cmp_ne_u32 vcc, 32, v{vt}
    s_cbranch_vccnz P_hs""".replace(f"v_add_u32 v{vt}, v{vt+1}", f"v_mov_b32 v{vt+3}, 0x01010101\n v_add_u32 v{vt}, v{vt+1}"))
def poll(tag, soff, n, thr):
    return [f"v_min_u32 v{vt+2}, {n-1}, v0", f"v_lshlrev_b32 v{vt+2}, 2, v{vt+2}", f"{tag}:"]+spin()+\
        [f"buffer_load_dword v{vt+3}, v{vt+2}, {WS}, {soff} offen sc1", "s_waitcnt vmcnt(0)", f"v_cmp_gt_u32 vcc, {thr}, v{vt+3}", f"s_cbranch_vccnz {tag}"]
def P1(A, flags):
    A(f"""s_mul_i32 {sH}, {sT}, 9363
    s_lshr_b32 {sH}, {sH}, 16
    s_mul_i32 {sA}, {sH}, 7
    s_sub_u32 {sRG}, {sT}, {sA}
    s_mov_b32 {sSEG}, {sRG}
    s_mov_b32 {sXB}, {XB0}""")
    A.ext(xdma(sSEG))
    A(f"s_lshl_b32 {sA}, {sH}, 8\n s_lshl_b32 {sB}, {sW}, 6\n s_add_u32 {sA}, {sA}, {sB}")
    wvoff(A, 8192, False, sA)
    W={"K":("a",0,42),"V":("a",128,44),"Q":("v",128,40)}
    items=[]
    for m in "KVQ":
        k,b,lo=W[m]
        for ks in range(16): items.append(dict(pre=setw(lo,4*MB) if ks==0 else [], so=(None,32*ks*8192,(32*ks+16)*8192), dst=(k,b+8*ks)))
    L,_=autowait(wload(items)); A.ext(L)
    AC=48
    acc=lambda m,t,s: AC+16*"KVQ".index(m)+8*t+4*s
    def mf(ks,t,x):
        o=[]
        for m in "KQV":
            k,b,_=W[m]
            for s in (0,1):
                w=vr(b+8*ks+4*s,4,k); d=acc(m,t,s); c=None if ks==0 else d
                o.append(m32(d,x,w,c) if m=="V" else m32(d,w,x,c))
        return o
    PK=96
    sc="sc1" if flags else ""
    epi=[f"s_lshl_b32 {sA}, {sSEG}, 5", f"s_add_u32 {sA}, {sA}, {sH}", f"s_lshl_b32 {sA}, {sA}, 2", f"s_add_u32 {sA}, {sA}, {sW}",
         f"s_lshl_b32 {sB}, {sA}, 11", f"s_add_u32 {sB}, {sB}, {WS_Q}", f"s_lshl_b32 {sA}, {sA}, 12"]
    def frag(dst,a0,a1): return [pk(dst,a0,a0+1),pk(dst+1,a0+2,a0+3),pk(dst+2,a1,a1+1),pk(dst+3,a1+2,a1+3)]
    for t in (0,1):
        epi+=frag(PK+4*t,acc("K",t,0),acc("K",t,1))+[f"buffer_store_dwordx4 {vr(PK+4*t,4)}, v{vL16}, {WS}, {sA} offen offset:{1024*t} {sc}"]
    for t in (0,1):
        epi+=frag(PK+8+4*t,acc("Q",t,0),acc("Q",t,1))+[f"buffer_store_dwordx4 {vr(PK+8+4*t,4)}, v{vL16}, {WS}, {sB} offen offset:{1024*t}"]
    for s in (0,1):
        epi+=frag(PK+16+4*s,acc("V",0,s),acc("V",1,s))+[f"buffer_store_dwordx4 {vr(PK+16+4*s,4)}, v{vL16}, {WS}, {sA} offen offset:{2048+1024*s} {sc}"]
    sig=[f"v_mov_b32 v{vt}, {sF}", "s_mov_b64 exec, 1", f"buffer_store_dword v{vt}, v{vZ}, {WS}, {sD} offen sc1", "s_mov_b64 exec, -1"] if flags else None
    if flags:
        A(f"""s_lshl_b32 {sD}, {sH}, 2
        s_add_u32 {sD}, {sD}, {sW}
        s_lshl_b32 {sD}, {sD}, 3
        s_add_u32 {sD}, {sD}, {sRG}
        s_lshl_b32 {sD}, {sD}, 2
        s_add_u32 {sD}, {sD}, {FL_KV}""")
        handshake(A)
    stream(A,"P1",7,mf,epi,6,sig)
def P2(A, flags):
    A(f"""s_cmp_ge_u32 {sT}, 220
    s_cbranch_scc1 P2_end
    s_mul_i32 {sC}, {sT}, 3277
    s_lshr_b32 {sC}, {sC}, 16
    s_mul_i32 {sA}, {sC}, 20
    s_sub_u32 {sSEG}, {sT}, {sA}
    s_lshl_b32 {sC}, {sC}, 2
    s_add_u32 {sC}, {sC}, {sW}
    s_min_u32 {sC}, {sC}, 42
    s_mov_b32 {sXB}, {XB0}""")
    A.ext(xdma(sSEG))
    A(f"s_lshl_b32 {sA}, {sC}, 6")
    wvoff(A, 2752, False, sA)
    items=[]
    for mi in (0,1):
        for ks in range(16): items.append(dict(pre=setw(48+2*mi,512*2752) if ks==0 else [], so=(None,32*ks*2752,(32*ks+16)*2752), dst=("a",128*mi+8*ks)))
    L,_=autowait(wload(items)); A.ext(L)
    AC=48
    def mf(ks,t,x):
        return [m32(AC+16*mi+8*t+4*s, vr(128*mi+8*ks+4*s,4,"a"), x, None if ks==0 else AC+16*mi+8*t+4*s) for mi in (0,1) for s in (0,1)]
    PK=96
    epi=[f"s_mul_i32 {sA}, {sSEG}, 86", f"s_add_u32 {sA}, {sA}, {sC}", f"s_lshl_b32 {sA}, {sA}, 10", f"s_add_u32 {sA}, {sA}, {WS_H}", f"s_add_u32 {sB}, {sA}, {43*1024}"]
    for t in (0,1):
        a=AC+8*t
        epi+=[f"v_mul_f32 v{a+r}, v{a+r}, v{a+16+r}" for r in range(8)]+[pk(PK+4*t+r,a+2*r,a+2*r+1) for r in range(4)]
        epi+=[f"buffer_store_dwordx4 {vr(PK+4*t,4)}, v{vL16}, {WS}, {(sA,sB)[t]} offen {'sc1' if flags else ''}"]
    stream(A,"P2",20,mf,epi,2,None)
    if flags:
        A(f"""s_cmp_lg_u32 {sW}, 0
        s_cbranch_scc1 P2_end
        s_mul_i32 {sC}, {sT}, 3277
        s_lshr_b32 {sC}, {sC}, 16
        s_mul_i32 {sA}, {sC}, 20
        s_sub_u32 {sA}, {sT}, {sA}
        s_lshl_b32 {sA}, {sA}, 5
        s_add_u32 {sA}, {sA}, {sC}
        s_lshl_b32 {sA}, {sA}, 2
        s_add_u32 {sA}, {sA}, {FL_H}
        s_mov_b64 exec, 1
        buffer_store_dword v{vONE}, v{vZ}, {WS}, {sA} offen sc1
        s_mov_b64 exec, -1""")
    A("P2_end:")
sMASK=60
sCS="s76"
ONES=240; HALF=244; NINF=246
def P3init(A):
    A(f"""v_and_b32 v{vt}, 15, v0
    v_lshrrev_b32 v{vt+1}, 4, v0
    v_lshlrev_b32 v{vt+1}, 2, v{vt+1}
    v_sub_u32 v{vt}, v{vt}, v{vt+1}
    s_lshr_b32 {sA}, {sW}, 1
    s_lshl_b32 {sA}, {sA}, 4
    v_add_u32 v{vt}, {sA}, v{vt}
    s_mov_b32 {sCS}, 0x3e0293ee
    v_mov_b32 v{NINF}, 0xff800000""")
    for tk in (0,1):
        for r in range(4): A(f"v_cmp_le_i32 s[{sMASK+8*tk+2*r}:{sMASK+8*tk+2*r+1}], {16*tk+r}, v{vt}")
    for k in range(4): A(f"v_mov_b32 v{ONES+k}, 0x3f803f80")
    for k in range(2): A(f"v_mov_b32 v{HALF+k}, 0x3f003f00")
Q3=16; KX3=32; VX3=64; KM3=80; VM3=96; S3=104; P3r=116; O3=124; L3=140
def P3pre(seg):
    L=[f"s_lshl_b32 {sA}, {seg}, 5", f"s_add_u32 {sA}, {sA}, {sH}", f"s_lshl_b32 {sB}, {sA}, 13", f"s_add_u32 {sB}, {sB}, {WS_Q}", f"s_lshl_b32 {sA}, {sA}, 14",
       f"s_lshr_b32 {sC}, {sW}, 1", f"s_lshl_b32 {sC}, {sC}, 10", f"s_add_u32 {sB}, {sB}, {sC}"]
    for w in range(4):
        L+=[f"s_add_u32 {sG}, {sB}, {2048*w}", f"buffer_load_dwordx4 {vr(Q3+4*w,4)}, v{vL16}, {WS}, {sG} offen",
            f"s_add_u32 {sG}, {sA}, {4096*w}"]+[f"buffer_load_dwordx4 {vr(KX3+16*tk+4*w,4)}, v{vL16}, {WS}, {sG} offen offset:{1024*tk}" for tk in (0,1)]
    L+=[f"s_and_b32 {sC}, {sW}, 1", f"s_lshl_b32 {sC}, {sC}, 13", f"s_add_u32 {sA}, {sA}, {sC}"]
    for k in (0,1):
        L+=[f"s_add_u32 {sG}, {sA}, {4096*k}"]+[f"buffer_load_dwordx4 {vr(VX3+8*k+4*s,4)}, v{vL16}, {WS}, {sG} offen offset:{2048+1024*s}" for s in (0,1)]
    return L
def P3x():
    L=[]
    for tk in (0,1):
        for w in range(4): L.append(m32(S3+4*tk, vr(KX3+16*tk+4*w,4), vr(Q3+4*w,4), None if w==0 else S3+4*tk))
    return L
def P3post(seg, sc):
    L=[f"s_lshl_b32 {sA}, {seg}, 5", f"s_add_u32 {sA}, {sA}, {sH}", f"s_lshl_b32 {sA}, {sA}, 13", f"s_add_u32 {sA}, {sA}, {WS_KM}"]
    for w in range(4): L+=[f"s_add_u32 {sG}, {sA}, {2048*w}", f"buffer_load_dwordx4 {vr(KM3+4*w,4)}, v{vL16}, {WS}, {sG} offen {sc}"]
    L+=[f"s_and_b32 {sC}, {sW}, 1", f"s_lshl_b32 {sC}, {sC}, 12", f"s_add_u32 {sA}, {sA}, {sC}"]
    for k in (0,1): L+=[f"buffer_load_dwordx4 {vr(VM3+4*k,4)}, v{vL16}, {WS}, {sA} offen offset:{1024+2048*k} {sc}"]
    L+=P3x()
    for k in range(8): L.append(f"v_cndmask_b32 v{S3+k}, v{NINF}, v{S3+k}, s[{sMASK+2*k}:{sMASK+2*k+1}]")
    m,t=vt,vt+1
    L+=[f"v_max3_f32 v{m}, v{S3}, v{S3+1}, v{S3+2}", f"v_max3_f32 v{t}, v{S3+3}, v{S3+4}, v{S3+5}", f"v_max3_f32 v{m}, v{m}, v{S3+6}, v{S3+7}"]
    for w in range(4): L.append(m32(S3+8, vr(KM3+4*w,4), vr(Q3+4*w,4), None if w==0 else S3+8))
    L+=[f"v_max3_f32 v{t}, v{t}, v{S3+8}, v{S3+9}", f"v_max3_f32 v{m}, v{m}, v{S3+10}, v{S3+11}", f"v_max_f32 v{m}, v{m}, v{t}",
        f"v_mov_b32 v{t}, v{m}", f"v_permlane32_swap_b32 v{m}, v{t}", f"v_max_f32 v{m}, v{m}, v{t}",
        f"v_mov_b32 v{t}, v{m}", f"v_permlane16_swap_b32 v{m}, v{t}", f"v_max_f32 v{m}, v{m}, v{t}", f"v_mul_f32 v{m}, {sCS}, v{m}"]
    L+=[f"v_fma_f32 v{S3+k}, v{S3+k}, {sCS}, -v{m}" for k in range(12)]+[f"v_exp_f32 v{S3+k}, v{S3+k}" for k in range(12)]
    L+=[pk(P3r+k,S3+2*k,S3+2*k+1) for k in range(6)]
    L+=[m32(L3,vr(ONES,4),vr(P3r,4))]+[m32(O3+4*k,vr(VX3+4*k,4),vr(P3r,4)) for k in range(4)]
    L+=[m16(L3,vr(HALF,2),vr(P3r+4,2),L3)]+[m16(O3+4*k,vr(VM3+2*k,2),vr(P3r+4,2),O3+4*k) for k in range(4)]
    L+=[f"s_lshl_b32 {sA}, {seg}, 1", f"s_lshr_b32 {sC}, {sW}, 1", f"s_add_u32 {sA}, {sA}, {sC}", f"s_lshl_b32 {sA}, {sA}, 5", f"s_add_u32 {sA}, {sA}, {sH}",
        f"s_lshl_b32 {sA}, {sA}, 1", f"s_and_b32 {sC}, {sW}, 1", f"s_add_u32 {sA}, {sA}, {sC}", f"s_lshl_b32 {sA}, {sA}, 11", f"s_add_u32 {sA}, {sA}, {WS_O}"]
    L+=[f"v_rcp_f32 v{m}, v{L3}"]+[f"v_mul_f32 v{O3+k}, v{O3+k}, v{m}" for k in range(16)]
    for k in (0,1):
        L+=[pk(S3+4*k+r,O3+8*k+2*r,O3+8*k+2*r+1) for r in range(4)]+[f"buffer_store_dwordx4 {vr(S3+4*k,4)}, v{vL16}, {WS}, {sA} offen offset:{1024*k} {sc}"]
    return L
sCB="s58"; sRG4="s59"; sRED="s77"; sBB="s78"
RG=16; A4=80; WD=104; GW=192; vRED=248; vOO=249; vBB=250
LDS_RED=0x20000; LDS_BB=0x8000*0+0x10000
def ring(items, depth=16):
    L=[]; n=len(items)
    for i in range(min(depth,n)): L+=items[i][0](RG+4*(i%depth))
    for i in range(n):
        L+=items[i][1](vr(RG+4*(i%depth),4))
        if i>=1 and i-1+depth<n: L+=items[i-1+depth][0](RG+4*((i-1)%depth))
    return L
def P4init(A):
    A(f"""s_and_b32 {sCB}, {sT}, 15
    s_lshr_b32 {sRG4}, {sT}, 4
    s_lshl_b32 {sA}, {sCB}, 6""")
    wvoff(A, 1024, True, sA)
    items=[]
    for k in range(11):
        pre=setw(52,1376*1024) if k==0 else []
        pre+=[f"s_mul_i32 {sC}, {sW}, 11", f"s_add_u32 {sC}, {sC}, {k}", f"s_min_u32 {sC}, {sC}, 42", f"s_lshl_b32 {sC}, {sC}, 15"]
        items.append(dict(pre=pre, so=(sC,0,8192), dst=("v",WD+8*k)))
    for k in range(32):
        pre=setw(46,4*MB)+[f"s_lshl_b32 {sD}, {sW}, 20"] if k==0 else []
        items.append(dict(pre=pre, so=(sD,k*32768,k*32768+8192), dst=("a",8*k)))
    L=[f"v_lshrrev_b32 v{vt}, 4, v0", f"v_lshlrev_b32 v{vt}, 4, v{vt}", f"s_lshl_b32 {sA}, {sW}, 8", f"v_add_u32 v{vt}, {sA}, v{vt}"]
    L+=[f"global_load_dwordx4 {vr(GW+4*k,4)}, v{vt}, s[54:55] offset:{64*k}" for k in range(4)]
    L,_=autowait(L+wload(items)); A.ext(L)
    A(f"""s_waitcnt vmcnt(0) lgkmcnt(0)
    s_cmp_lg_u32 {sW}, 3
    s_cbranch_scc1 P4_nz""")
    for k in range(8): A(f"v_mov_b32 v{WD+80+k}, 0")
    A(f"""P4_nz:
    s_lshl_b32 {sA}, {sW}, 10
    v_add_u32 v{vRED}, {sA}, v{vL16}
    v_and_b32 v{vt}, 15, v0
    v_lshlrev_b32 v{vt}, 10, v{vt}
    v_lshrrev_b32 v{vt+1}, 4, v0
    v_lshl_add_u32 v{vOO}, v{vt+1}, 3, v{vt}
    s_lshl_b32 {sA}, {sW}, 11
    s_add_u32 {sA}, {sA}, 0x10000
    v_add_u32 v{vBB}, {sA}, v{vL16}
    s_barrier""")
def reduce4(extra_w=[], extra_r=[]):
    L=[f"ds_write_b128 v{vRED}, {vr(A4+4*k,4)} offset:{4096*k}" for k in range(4)]+extra_w
    L+=[f"s_mul_i32 {sA}, {sW}, 3072", f"v_add_u32 v{vt}, {sA}, v{vRED}", "s_waitcnt lgkmcnt(0)", "s_barrier"]
    L+=[f"ds_read_b128 {vr(A4+4*k,4)}, v{vt} offset:{1024*k}" for k in range(4)]+extra_r
    L+=[f"v_xor_b32 v{vRED}, 0x8000, v{vRED}"]
    for r in range(4): L+=[f"v_add_f32 v{A4+r}, v{A4+r}, v{A4+4+r}", f"v_add_f32 v{A4+8+r}, v{A4+8+r}, v{A4+12+r}"]
    for r in range(4): L+=[f"v_add_f32 v{A4+r}, v{A4+r}, v{A4+8+r}"]
    return L
def P4b(A, sc):
    A(f"s_mov_b32 {sSEG}, {sRG4}\n v_mov_b32 v{vt+5}, v{vBB}\n P4b_top:")
    Z=A4+16
    it=[]
    for kk in range(4):
        for t in (0,1):
            it.append((lambda r,kk=kk,t=t: [f"s_add_u32 {sG}, {sE}, {t*16384+kk*64}", f"buffer_load_dwordx4 {vr(r,4)}, v{vXO}, {XS}, {sG} offen"],
                       lambda x,kk=kk,t=t: [m32(Z+4*t, vr(GW+4*kk,4), x, None if kk==0 else Z+4*t)]))
    for k in range(11):
        for t in (0,1):
            it.append((lambda r,k=k,t=t: [f"s_add_u32 {sG}, {sF if k<10 else sD}, {t*43*1024+(k*1024 if k<10 else 0)}", f"buffer_load_dwordx4 {vr(r,4)}, v{vL16}, {WS}, {sG} offen {sc}"],
                       lambda x,k=k,t=t: [m32(A4+8*t+4*s, vr(WD+8*k+4*s,4), x, None if k==0 else A4+8*t+4*s) for s in (0,1)]))
    L=[f"s_lshl_b32 {sE}, {sSEG}, 15", f"s_mul_i32 {sA}, {sSEG}, 86", f"s_mul_i32 {sB}, {sW}, 11", f"s_add_u32 {sC}, {sB}, 10", f"s_min_u32 {sC}, {sC}, 42",
       f"s_add_u32 {sF}, {sA}, {sB}", f"s_lshl_b32 {sF}, {sF}, 10", f"s_add_u32 {sF}, {sF}, {WS_H}", f"s_add_u32 {sD}, {sA}, {sC}", f"s_lshl_b32 {sD}, {sD}, 10", f"s_add_u32 {sD}, {sD}, {WS_H}"]
    if sc:
        L=[f"s_mul_i32 {sA}, {sSEG}, 3277", f"s_lshr_b32 {sA}, {sA}, 16", f"s_mul_i32 {sA}, {sA}, 20", f"s_sub_u32 {sA}, {sSEG}, {sA}", f"s_lshl_b32 {sA}, {sA}, 7", f"s_add_u32 {sA}, {sA}, {FL_H}"]+poll("P4b_poll",sA,11,1)+L
    L+=ring(it)
    zw=[f"s_mul_i32 {sA}, {sW}, 1020", f"v_subrev_u32 v{vt+1}, {sA}, v{vRED}"]+[f"ds_write_b32 v{vt+1}, v{Z+4*t} offset:{0x4000+1024*t}" for t in (0,1)]+\
       [f"s_lshr_b32 {sB}, {sW}, 1", f"s_sub_u32 {sB}, {sB}, {sW}", f"s_lshl_b32 {sB}, {sB}, 10", f"v_add_u32 v{vt+2}, {sB}, v{vRED}"]
    zr=[f"ds_read_b128 {vr(Z,4)}, v{vt+2} offset:{0x4000}"]
    L+=reduce4(zw,zr)
    L+=[f"v_add_f32 v{Z}, v{Z}, v{Z+1}", f"v_add_f32 v{Z+2}, v{Z+2}, v{Z+3}", f"v_add_f32 v{Z}, v{Z}, v{Z+2}", f"v_mul_f32 v{Z}, 0xbfb8aa3b, v{Z}", f"v_exp_f32 v{Z}, v{Z}",
        f"v_add_f32 v{Z}, 1.0, v{Z}", f"v_rcp_f32 v{Z}, v{Z}", f"v_sub_f32 v{Z+1}, 1.0, v{Z}"]+[f"v_mul_f32 v{A4+r}, v{A4+r}, v{Z+1}" for r in range(4)]
    L+=[f"ds_write_b128 v{vt+5}, {vr(A4,4)}", f"ds_write_b32 v{vt+5}, v{Z} offset:1024", f"v_add_u32 v{vt+5}, 0x2000, v{vt+5}"]
    L,_=autowait(L); A.ext(L)
    A(f"s_add_u32 {sSEG}, {sSEG}, 14\n s_cmp_lt_u32 {sSEG}, 64\n s_cbranch_scc1 P4b_top")
def P4a(seg, sc):
    it=[]
    for k in range(32):
        for t in (0,1):
            it.append((lambda r,k=k,t=t: ([f"s_add_u32 {sG}, {sE}, {(k>>2)*4096}", f"s_add_u32 {sF}, {sG}, {128*1024}"] if (k&3)==0 and t==0 else [])+[f"buffer_load_dwordx4 {vr(r,4)}, v{vL16}, {WS}, {(sG,sF)[t]} offen offset:{(k&3)*1024} {sc}"],
                       lambda x,k=k,t=t: [m32(A4+8*t+4*s, vr(8*k+4*s,4,"a"), x, None if k==0 else A4+8*t+4*s) for s in (0,1)]))
    L=[f"s_lshl_b32 {sE}, {seg}, 18", f"s_lshl_b32 {sA}, {sW}, 15", f"s_add_u32 {sE}, {sE}, {sA}", f"s_add_u32 {sE}, {sE}, {WS_O}"]
    L+=ring(it)
    B=A4+16
    L+=reduce4([],[f"ds_read_b128 {vr(B,4)}, v{vBB}", f"ds_read_b32 v{B+4}, v{vBB} offset:1024"])
    L+=[f"v_add_u32 v{vBB}, 0x2000, v{vBB}", f"s_lshl_b32 {sA}, {seg}, 15", f"s_lshr_b32 {sB}, {sW}, 1", f"s_lshl_b32 {sB}, {sB}, 14", f"s_add_u32 {sA}, {sA}, {sB}",
        f"s_lshl_b32 {sB}, {sCB}, 6", f"s_add_u32 {sA}, {sA}, {sB}", f"s_and_b32 {sB}, {sW}, 1", f"s_lshl_b32 {sB}, {sB}, 5", f"s_add_u32 {sA}, {sA}, {sB}"]
    L+=[f"v_fma_f32 v{A4+r}, v{A4+r}, v{B+4}, v{B+r}" for r in range(4)]+[pk(A4,A4,A4+1),pk(A4+1,A4+2,A4+3), f"buffer_store_dwordx2 {vr(A4,2)}, v{vOO}, {OUT}, {sA} offen"]
    return L
sS3="s80"; sS4="s81"
def tasks(A):
    A(f"""s_mov_b32 {sS3}, {sRG}
    s_mov_b32 {sS4}, {sRG4}
    T_top:
    s_cmp_gt_u32 {sS3}, {sS4}
    s_cbranch_scc1 T_4
    s_cmp_ge_u32 {sS3}, 64
    s_cbranch_scc1 L_exit""")
    L=P3pre(sS3)+[f"s_lshl_b32 {sD}, {sH}, 7", f"s_add_u32 {sD}, {sD}, {FL_PR}", f"s_add_u32 {sE}, {sS3}, 1"]+poll("T3_poll",sD,1,sE)+P3post(sS3,"sc1")
    L+=[f"s_lshl_b32 {sD}, {sS3}, 5", f"s_add_u32 {sD}, {sD}, {sH}", f"s_lshl_b32 {sD}, {sD}, 2", f"s_add_u32 {sD}, {sD}, {sW}", f"s_lshl_b32 {sD}, {sD}, 2", f"s_add_u32 {sD}, {sD}, {FL_O}",
        "s_waitcnt vmcnt(0)", "s_mov_b64 exec, 1", f"buffer_store_dword v{vONE}, v{vZ}, {WS}, {sD} offen sc1", "s_mov_b64 exec, -1"]
    L,_=autowait(L); A.ext(L)
    A(f"""s_add_u32 {sS3}, {sS3}, 7
    s_branch T_top
    T_4:
    s_cmp_ge_u32 {sS4}, 64
    s_cbranch_scc1 L_exit""")
    L=[f"s_lshl_b32 {sD}, {sS4}, 2", f"s_add_u32 {sD}, {sD}, {sW}", f"s_lshl_b32 {sD}, {sD}, 7", f"s_add_u32 {sD}, {sD}, {FL_O}"]+poll("T4_poll",sD,32,1)+P4a(sS4,"sc1")
    L,_=autowait(L); A.ext(L)
    A(f"s_add_u32 {sS4}, {sS4}, 14\n s_branch T_top")
def parallel(A):
    setup(A); P1(A,True); P2(A,True); P4init(A); P4b(A,"sc1"); P3init(A); tasks(A)
def entry(A,name):
    A.ext(khdr(name))
    A(f"s_and_b32 s3, s2, 7\n s_cmp_eq_u32 s3, 0\n s_cbranch_scc1 {name}_x\n s_cmp_ge_u32 s2, 256\n s_cbranch_scc1 {name}_x")
    setup(A)
def hrg(A):
    A(f"s_mul_i32 {sH}, {sT}, 9363\n s_lshr_b32 {sH}, {sH}, 16\n s_mul_i32 {sA}, {sH}, 7\n s_sub_u32 {sRG}, {sT}, {sA}")
def k_gemm(name="k1_kernel"):
    A=Asm(); entry(A,name); P1(A,False); P2(A,False); A(f"{name}_x:\n s_endpgm"); return A.finish()+kdesc(name,512,256)
def k_attn(name="k3_kernel"):
    A=Asm(); entry(A,name); hrg(A); P3init(A)
    A(f"s_mov_b32 {sSEG}, {sRG}\n P3_top:")
    L,_=autowait(P3pre(sSEG)+P3post(sSEG,"")); A.ext(L)
    A(f"s_add_u32 {sSEG}, {sSEG}, 7\n s_cmp_lt_u32 {sSEG}, 64\n s_cbranch_scc1 P3_top\n {name}_x:\n s_endpgm"); return A.finish()+kdesc(name,512,256)
def k_out(name="k4_kernel"):
    A=Asm(); entry(A,name); P4init(A); P4b(A,"")
    A(f"s_mov_b32 {sSEG}, {sRG4}\n P4a_top:")
    L,_=autowait(P4a(sSEG,"")); A.ext(L)
    A(f"s_add_u32 {sSEG}, {sSEG}, 14\n s_cmp_lt_u32 {sSEG}, 64\n s_cbranch_scc1 P4a_top\n {name}_x:\n s_endpgm"); return A.finish()+kdesc(name,512,256)
HDR='.amdgcn_target "amdgcn-amd-amdhsa--gfx950"\n.text\n'
if __name__=="__main__":
    import sys
    for n,f in (("k1",k_gemm),("k3",k_attn),("k4",k_out)): open(f"../exp/{sys.argv[1]}_{n}.s","w").write(HDR+f())
```

```python
from asmlib import *
WS_KV   = 0
WS_KM   = 32 << 20
WS_MEM  = 48 << 20
WS_IN   = (48 << 20) + (1 << 19)
WS_DBG  = 50 << 20
vIDX=1; SEL0=2; SEL1=4; ONESM=6; RSEL=8; ONES=12; SENT=16
aX=20; aR=[21,22,23]; aW=24; aKV=25; aT=26; aP=27; aPUB=28; vTCH=29; vT0=30; vT1=31
X=32; KV=64; RING=80; P=104
vRES=144
def vr(b,n=1): return f"v{b}" if n==1 else f"v[{b}:{b+n-1}]"
SRD="s[8:11]"; sMC="s12"; sMN="s13"; sIC="s14"; sIO="s15"; sP0="s16"; sP1="s17"; sKV="s18"; sKN="s19"; sKM="s20"
sSTEP="s21"; sH="s22"; sW="s23"; sSPIN="s24"; sLO8="s[26:27]"; sLOH="s[28:29]"; sC="s30"
WSRD="s[32:35]"
from par import FL, FL_KV, FL_PR
sFO="s56"; sFN="s57"; sFE="s58"; sPR="s59"
OPT=set()
LDS_EX=8192; LDS_W=16384

def qkv_order():
    o=[]
    for m in "QK":
        for j in (0,1):
            for s in (0,1): o.append((m,j,s))
    for m in "QK":
        for j in range(2,8):
            for s in (0,1): o.append((m,j,s))
    for j in range(8):
        for s in (0,1): o.append(("V",j,s))
    return o
def wo_order():
    return [("O",u,jj,t) for u in (0,1) for jj in range(4) for t in (0,1)]
RINGPOS=[8,12,16,20,24,28,32,36,40,44,47]
WOLDS=[3,5,7,9,11,13,15]
def placement():
    loc={}; na=nv=nl=0
    q=qkv_order(); w=wo_order()
    for i,k in enumerate(q):
        if i in RINGPOS: loc[k]=("l",nl); nl+=1
    for i,k in enumerate(w):
        if i in WOLDS: loc[k]=("l",nl); nl+=1
    for k in q+w:
        if k in loc: continue
        if na<32: loc[k]=("a",8*na); na+=1
        else: loc[k]=("v",vRES+8*nv); nv+=1
    assert nl==18 and nv==14
    return loc
LOC=placement()

def prologue(A, bounded):
    A(f"""
    v_lshrrev_b32 v2, 6, v0
    v_and_b32 v0, 63, v0
    s_lshr_b32 {sH}, s2, 3
    v_readfirstlane_b32 {sW}, v2
    s_load_dwordx2 s[8:9], s[0:1], 112
    s_load_dwordx2 s[36:37], s[0:1], 104
    s_load_dwordx2 s[38:39], s[0:1], 8
    s_load_dwordx8 s[40:47], s[0:1], 16
    s_mov_b32 s10, 0x10000000
    s_mov_b32 s11, 0x20000
    s_mov_b32 s34, 0x400000
    s_mov_b32 s35, 0x20000
    v_and_b32 v2, 15, v0
    v_lshrrev_b32 v3, 4, v0
    """)
    A(f"""
    s_lshl_b32 s48, {sW}, 11
    v_lshlrev_b32 v4, 4, v0
    v_add_u32 v{aX}, s48, v4
    """)
    for k in range(3):
        A(f"""
        s_add_u32 s49, {sW}, {k+1}
        s_and_b32 s49, s49, 3
        s_lshl_b32 s49, s49, 11
        v_add_u32 v{aR[k]}, s49, v4""")
    A(f"""
    s_mul_i32 s49, {sW}, {18*2048}
    s_add_u32 s49, s49, {LDS_W}
    v_add_u32 v{aW}, s49, v4
    s_lshl_b32 s49, {sW}, 12
    v_add_u32 v{aKV}, s49, v4
    v_lshlrev_b32 v5, 6, v0
    v_add_u32 v{aT}, s49, v5
    """)
    A(f"""
    s_lshl_b32 s49, {sW}, 16
    v_lshlrev_b32 v5, 13, v3
    v_add_u32 v5, s49, v5
    v_lshrrev_b32 v6, 2, v2
    v_lshl_add_u32 v5, v6, 11, v5
    v_and_b32 v6, 3, v2
    v_lshl_add_u32 v{aP}, v6, 4, v5
    s_lshr_b32 s49, {sH}, 1
    s_lshl_b32 s49, s49, 6
    s_and_b32 s50, {sH}, 1
    s_lshl_b32 s51, s50, 15
    s_add_u32 {sP0}, s49, s51
    s_add_u32 {sP0}, {sP0}, {WS_IN}
    s_xor_b32 {sP1}, {sP0}, {32768+1024}
    s_lshl_b32 {sIC}, {sH}, 13
    s_add_u32 {sIC}, {sIC}, {WS_IN}
    s_xor_b32 {sIO}, {sIC}, {1<<18}
    s_mov_b32 {sMC}, {WS_MEM}
    s_mov_b32 {sMN}, {WS_MEM+8192}
    s_lshl_b32 {sKV}, {sH}, 14
    s_add_u32 {sKN}, {sKV}, {1<<19}
    s_lshl_b32 {sKM}, {sH}, 13
    s_add_u32 {sKM}, {sKM}, {WS_KM}
    s_mov_b32 {sSTEP}, 0
    s_mov_b32 s26, 0x00ff00ff
    s_mov_b32 s27, 0x00ff00ff
    s_mov_b32 s28, -1
    s_mov_b32 s29, 0
    s_mov_b32 {sC}, 0x3e0293ee
    """)
    A(f"""
    s_lshr_b32 s49, {sH}, 1
    s_lshl_b32 s49, s49, 2
    s_add_u32 s49, s49, {sW}
    s_lshl_b32 s49, s49, 7
    s_lshl_b32 s50, s50, 6
    s_add_u32 s49, s49, s50
    v_bfe_u32 v5, v0, 1, 2
    v_lshlrev_b32 v5, 4, v5
    v_and_b32 v6, 1, v3
    v_lshl_add_u32 v5, v6, 3, v5
    v_lshrrev_b32 v6, 1, v3
    v_lshl_add_u32 v5, v6, 2, v5
    v_add_u32 v{aPUB}, s49, v5
    """)
    for k in range(4): A(f"v_mov_b32 v{SENT+k}, -1")
    A("s_waitcnt lgkmcnt(0)")
    for so in (sIC, sIO):
        for o in (0,1024): A(f"buffer_store_dwordx4 {vr(SENT,4)}, v{aX}, {SRD}, {so} offen offset:{o} sc1")
    for so in (sMC, sMN): A(f"buffer_store_dword v{SENT}, v{aPUB}, {SRD}, {so} offen sc1")
    for k in range(4): A(f"v_mov_b32 v{X+k}, 0")
    A(f"""s_lshl_b32 s49, {sH}, 11
    s_and_b32 s50, {sW}, 1
    s_lshl_b32 s50, s50, 10
    s_add_u32 s49, s49, s50
    s_add_u32 s49, s49, {FL}
    buffer_store_dwordx4 {vr(X,4)}, v4, {SRD}, s49 offen sc1
    s_lshl_b32 {sPR}, {sH}, 7
    s_lshl_b32 {sFO}, {sW}, 5
    s_add_u32 {sFO}, {sFO}, {sPR}
    s_add_u32 {sFO}, {sFO}, {FL_KV}
    s_add_u32 {sFE}, {sFO}, 28
    s_add_u32 {sPR}, {sPR}, {FL_PR}
    s_mov_b32 {sFN}, 1""")
    A(f"""
    s_waitcnt vmcnt(0)
    s_barrier
    s_cmp_lg_u32 {sW}, 0
    s_cbranch_scc1 L_noarr
    s_getreg_b32 s49, hwreg(HW_REG_XCC_ID)
    s_and_b32 s49, s49, 7
    s_lshl_b32 s49, s49, 3
    s_lshl_b64 s[50:51], 1, s49
    v_mov_b32 v6, s50
    v_mov_b32 v7, s51
    v_mov_b32 v5, 0
    s_mov_b64 exec, 1
    global_atomic_add_x2 v5, v[6:7], s[36:37] offset:248 sc1
    s_mov_b64 exec, -1
    L_noarr:
    """)
    A(f"""
    v_lshrrev_b32 v5, 1, v3
    v_and_b32 v6, 1, v3
    v_lshlrev_b32 v7, 17, v5
    v_lshl_add_u32 v7, v6, 15, v7
    s_lshl_b32 s49, {sH}, 8
    s_lshl_b32 s50, {sW}, 6
    s_add_u32 s49, s49, s50
    v_add_u32 v7, s49, v7
    v_lshl_add_u32 v29, v2, 1, v7
    v_bfe_u32 v30, v2, 1, 1
    v_lshl_add_u32 v7, v30, 5, v7
    v_lshrrev_b32 v30, 2, v2
    v_lshl_add_u32 v7, v30, 3, v7
    v_and_b32 v30, 1, v2
    v_lshl_add_u32 v30, v30, 2, v7
    v_lshlrev_b32 v7, 12, v5
    v_lshl_add_u32 v7, v6, 11, v7
    v_lshl_add_u32 v7, v2, 2, v7
    s_lshl_b32 s49, {sH}, 17
    s_lshl_b32 s50, {sW}, 8
    s_add_u32 s49, s49, s50
    v_add_u32 v31, s49, v7
    s_mov_b32 s52, 0x05040100
    s_mov_b32 s53, 0x07060302
    s_and_b32 s54, {sH}, 1
    s_lshl_b32 s54, s54, 7
    """)
    batches=[(m,j) for m in "QK" for j in range(8)]+[("V",j,s_) for j in range(8) for s_ in (0,1)]+[("O",u,jj) for u in (0,1) for jj in range(4)]
    NB=3; ST=32; TMP=ST+16*NB+0
    def issue(bi):
        b=batches[bi]; st=ST+16*(bi%NB); L=[]
        mi="QKVO".index(b[0])
        if bi%8==0: L+= [f"s_mov_b32 s32, s{40+2*mi}", f"s_mov_b32 s33, s{41+2*mi}"]
        if b[0]!="O":
            L+=[f"s_lshl_b32 s49, {sW}, 1", f"s_add_u32 s49, s49, {b[1]}", "s_and_b32 s49, s49, 7", "s_lshl_b32 s49, s49, 19"]
            for D in range(8):
                for e in (0,1):
                    row=32*(D>>2)+8*(D&1)+2*((D>>1)&1)+e
                    if b[0]=="V":
                        L+=[f"s_add_u32 s50, s49, {row*8192}", f"buffer_load_ushort v{st+2*D+e}, v29, {WSRD}, s50 offen offset:{32*b[2]}"]
                    else:
                        L+=[f"s_add_u32 s50, s49, {row*8192}", f"buffer_load_dword v{st+2*D+e}, v30, {WSRD}, s50 offen"]
        else:
            L+=[f"s_add_u32 s49, {sW}, {b[2]}", "s_and_b32 s49, s49, 3", "s_lshl_b32 s49, s49, 15", f"s_xor_b32 s50, s54, {128*b[1]}", "s_add_u32 s49, s49, s50"]
            for D in range(8):
                for e in (0,1):
                    row=8*(D>>2)+((D>>1)&1)+16*e
                    L+=[f"s_add_u32 s50, s49, {row*1024+64*(D&1)}", f"buffer_load_dword v{st+2*D+e}, v31, {WSRD}, s50 offen"]
        return L
    def consume(bi):
        b=batches[bi]; st=ST+16*(bi%NB); L=[]
        for s in ((0,) if b[0]=="V" else (0,1)):
            kind,idx=LOC[b if b[0]=="V" else b+(s,)]
            dst = idx if kind=="v" else TMP+8*s
            for D in range(8): L.append(f"v_perm_b32 v{dst+D}, v{st+2*D+1}, v{st+2*D}, s{52+s}")
            if kind=="a":
                for D in range(8): L.append(f"v_accvgpr_write_b32 a{idx+D}, v{dst+D}")
            if kind=="l":
                L+=[f"ds_write_b128 v{aW}, {vr(dst,4)} offset:{idx*2048}", f"ds_write_b128 v{aW}, {vr(dst+4,4)} offset:{idx*2048+1024}"]
        return L
    L=[]
    for bi in range(NB): L+=issue(bi)
    for bi in range(len(batches)):
        L+=consume(bi)
        if bi+NB<len(batches): L+=issue(bi+NB)
    L,_=autowait(L); A.ext(L)
    A(f"""
    v_and_b32 v2, 15, v0
    v_lshrrev_b32 v3, 4, v0
    v_and_b32 v5, 7, v0
    v_mov_b32 v6, 0x4444
    v_mov_b32 v7, 0xeeee
    v_cndmask_b32 v{vIDX}, v7, v6, {sLO8}
    v_lshlrev_b32 v30, 2, v3
    v_sub_u32 v30, v5, v30
    v_mov_b32 v31, v5
    v_mov_b32 v29, 0x3f80
    v_mov_b32 v96, 0x3f800000
    """)
    def selgen(dst, src, add, n):
        for k in range(n):
            A(f"""v_cmp_eq_u32 vcc, {2*k-add}, v{src}
            v_cndmask_b32 v97, 0, v29, vcc
            v_cmp_eq_u32 vcc, {2*k+1-add}, v{src}
            v_cndmask_b32 v{dst+k}, v97, v96, vcc""")
    selgen(SEL0,30,0,2); selgen(SEL1,30,8,2); selgen(RSEL,31,0,4)
    for k in range(4): A(f"v_mov_b32 v{ONES+k}, 0x3f803f80")
    for k in range(2): A(f"v_cndmask_b32 v{ONESM+k}, 0, v{ONES}, {sLOH}")
    A(f"""
    v_lshlrev_b32 v30, 10, v31
    v_lshrrev_b32 v31, 3, v0
    v_lshl_add_u32 v30, v31, 4, v30
    s_lshl_b32 s49, {sW}, 8
    v_add_u32 v30, s49, v30
    global_load_dwordx4 {vr(X,4)}, v30, s[38:39]
    global_load_dwordx4 {vr(X+4,4)}, v30, s[38:39] offset:128
    s_waitcnt lgkmcnt(0)
    """)
    A.ext(ringload(0,0)+ringload(1,1)+ringload(2,2)+zero(P,24))
    A(f"""
    v_mov_b32 v30, 0
    s_mov_b32 {sSPIN}, 0
    L_hs:
    global_load_dwordx2 v[64:65], v30, s[36:37] offset:248 sc1
    s_waitcnt vmcnt(0)
    v_readfirstlane_b32 s50, v64
    v_readfirstlane_b32 s51, v65
    """)
    if bounded: A(f"s_add_u32 {sSPIN}, {sSPIN}, 1\n s_cmp_gt_u32 {sSPIN}, 0x100000\n s_cbranch_scc1 L_end")
    A(f"""
    s_add_u32 s49, s50, s51
    s_mul_i32 s49, s49, 0x01010101
    s_lshr_b32 s49, s49, 24
    s_cmp_lg_u32 s49, 32
    s_cbranch_scc1 L_hs
    s_or_b32 s49, s50, s51
    s_and_b32 s49, s49, 0x20202020
    s_waitcnt lgkmcnt(0)
    """)
    A("L_kv0:")
    A(f"s_add_u32 {sSPIN}, {sSPIN}, 1\n s_cmp_gt_u32 {sSPIN}, 0x200000\n s_cbranch_scc1 L_end")
    A(f"""buffer_load_dwordx2 v[64:65], off, {SRD}, {sFO} sc1
    s_waitcnt vmcnt(0)
    v_min_u32 v64, v64, v65
    v_cmp_gt_u32 vcc, 1, v64
    s_cbranch_vccnz L_kv0
    s_add_u32 {sFO}, {sFO}, 8""")

def ringload(slot, ldsidx, base=None):
    b = RING+8*slot if base is None else base
    return [f"ds_read_b128 {vr(b,4)}, v{aW} offset:{ldsidx*2048}", f"ds_read_b128 {vr(b+4,4)}, v{aW} offset:{ldsidx*2048+1024}"]
def zero(b,n): return [f"v_mov_b64 {vr(b+k,2)}, 0" for k in range(0,n,2)]
def smf(acc,a,breg): return f"v_smfmac_f32_16x16x64_bf16 {vr(acc,4)}, {vr(a,4)}, {breg}, v{vIDX}"
def m32(d,a,b,c="0"): return f"v_mfma_f32_16x16x32_bf16 {vr(d,4)}, {vr(a,4)}, {vr(b,4)}, {c}"
def m16(d,a,b,c="0"): return f"v_mfma_f32_16x16x16_bf16 {vr(d,4)}, {vr(a,2)}, {vr(b,2)}, {c}"
def pk(d,a,b): return f"v_cvt_pk_bf16_f32 v{d}, v{a}, v{b}"
def fold(acc):
    return [f"v_permlane32_swap_b32 v{acc+r}, v{acc+4+r}" for r in range(4)] + [f"v_add_f32 v{acc+r}, v{acc+r}, v{acc+4+r}" for r in range(4)] + [pk(acc+4,acc,acc+1), pk(acc+5,acc+2,acc+3)]
def check8(b, t):
    return [f"v_max3_u32 v{t}, v{b}, v{b+1}, v{b+2}", f"v_max3_u32 v{t+1}, v{b+3}, v{b+4}, v{b+5}", f"v_max3_u32 v{t}, v{t}, v{b+6}, v{b+7}",
            f"v_max_u32 v{t}, v{t}, v{t+1}", f"v_cmp_eq_u32 vcc, -1, v{t}"]

def loop(A, tag, sc, bounded, dbg=False, prof=False):
    aQ,aK,aV,aO,qT=P,P+8,P+16,P+24,P+36
    ACC={"Q":aQ,"K":aK,"V":aV}
    spin = (lambda: [f"s_add_u32 {sSPIN}, {sSPIN}, 1", f"s_cmp_gt_u32 {sSPIN}, 0x200000", "s_cbranch_scc1 L_end"]) if bounded else (lambda: [])
    q=qkv_order()
    ringuse={p:i for i,p in enumerate(RINGPOS)}
    def qs(i):
        m,j,s=q[i]; kind,idx=LOC[q[i]]
        if kind=="l": b=vr(RING+8*(ringuse[i]%3),8)
        else: b=f"{kind}[{idx}:{idx+7}]"
        L=[smf(ACC[m]+4*s, X+4*j, b)]
        if kind=="l" and ringuse[i]+3<len(RINGPOS): L+=ringload(ringuse[i]%3, ringuse[i]+3)
        return L
    w=wo_order()
    wdst={}
    for n,p in enumerate(WOLDS): wdst[p] = X+8*n if n<4 else RING+8*(n-4)
    nd=[0]
    def dump(b,n):
        if not dbg: return []
        o=["s_nop 7","s_nop 7","s_waitcnt lgkmcnt(0)", f"v_lshlrev_b32 v{vTCH}, 2, v0", f"s_lshl_b32 s70, {sH}, 10", f"s_lshl_b32 s71, {sW}, 8", "s_add_u32 s70, s70, s71"]
        for k in range(n):
            o+=[f"s_add_u32 s71, s70, {WS_DBG+65536+nd[0]*32768}", f"buffer_store_dword v{b+k}, v{vTCH}, {SRD}, s71 offen"]; nd[0]+=1
        return ["s_waitcnt vmcnt(0)"]+o+["s_waitcnt vmcnt(0)"]
    def T(k): return [f"s_memtime s[{66+2*k}:{67+2*k}]"] if prof else []
    L=[f"{tag}_top:"]+T(0)
    L+=[f"{tag}_poll:"]+spin()
    L+=[f"buffer_load_dwordx4 {vr(X,4)}, v{aX}, {SRD}, {sMC} offen sc1", f"buffer_load_dwordx4 {vr(X+4,4)}, v{aX}, {SRD}, {sMC} offen offset:1024 sc1", "s_waitcnt vmcnt(0)"]
    L+=check8(X,vT0)+[f"s_cbranch_vccnz {tag}_poll"]
    L+=[f"{tag}_go:", "s_waitcnt vmcnt(0)"]+T(1)
    L+=[f"ds_write_b128 v{aX}, {vr(X,4)}", f"ds_write_b128 v{aX}, {vr(X+4,4)} offset:1024"]
    L+=qs(0)+qs(1)+["s_waitcnt lgkmcnt(0)","s_barrier"]+T(2)
    xr=[f"ds_read_b128 {vr(X+4*j,4)}, v{aR[j//2-1]} offset:{1024*(j&1)}" for j in range(2,8)]
    kv=[f"buffer_load_dwordx4 {vr(KV+4*k,4)}, v{aKV}, {SRD}, {sKV} offen offset:{1024*k} sc1" for k in range(4)]
    bg=[f"buffer_load_dword v{vTCH}, v{aT}, {SRD}, {sKN} offen sc1",
        f"buffer_load_dword v0, off, {SRD}, {sFO} sc1",
        f"buffer_store_dwordx4 {vr(SENT,4)}, v{aX}, {SRD}, {sIO} offen {sc}", f"buffer_store_dwordx4 {vr(SENT,4)}, v{aX}, {SRD}, {sIO} offen offset:1024 {sc}",
        f"buffer_store_dword v{SENT}, v{aPUB}, {SRD}, {sMN} offen {sc}"]
    L+=xr[:2]
    def seq(lo,hi,fill,per=2,lead=0):
        out=[]; f=list(fill)
        for n,i in enumerate(range(lo,hi)):
            g=qs(i); out+=g; k=per-(len(g)-1)
            if n>=lead:
                for _ in range(max(k,0)):
                    if f: out.append(f.pop(0))
        return out+f
    L+=seq(2,8,xr[2:]+kv+bg)
    L+=seq(8,20,[])
    qpost=fold(aQ)+[m16(aO,aQ+4,SEL0), m16(aO+4,aQ+4,SEL1)]
    L+=seq(20,28,qpost,lead=2)
    qpost2=[pk(qT+r,aO+r,aO+4+r) for r in range(4)]+[m32(aQ,KV,qT), m32(aQ+4,KV+4,qT)]
    L+=seq(28,32,qpost2,lead=1)
    sx=[f"v_cndmask_b32 v{aQ+r}, v{aQ+4+r}, v{aQ+r}, {sLO8}" for r in range(4)]+[f"ds_write_b128 v{aX}, {vr(aQ,4)} offset:{LDS_EX}"]
    kpost=fold(aK)+[m16(aO,aK+4,SEL0), m16(aO+4,aK+4,SEL1)]
    L+=seq(32,36,kpost,per=3,lead=1)
    L+=seq(36,38,sx,per=3)
    kT=aK+4
    L+=[pk(kT+r,aO+r,aO+4+r) for r in range(4)]+[m32(aK,kT,qT)]
    L+=seq(38,40,[f"buffer_store_dwordx4 {vr(kT,4)}, v{aX}, {SRD}, {sKM} offen {'' if 'kmplain' in OPT else 'sc1'}"])
    L+=[f"v_cndmask_b32 v{aK+r}, v{aK+2+r}, v{aK+r}, {sLO8}" for r in range(2)]+[f"ds_write_b64 v{aX}, {vr(aK,2)} offset:{LDS_EX+1024}"]
    L+=T(3)+seq(40,42,[])+["s_waitcnt lgkmcnt(0)","s_barrier"]+T(4)
    sr=[]
    for k in range(3): sr+=[f"ds_read_b128 {vr(aO+4*k,4)}, v{aR[k]} offset:{LDS_EX}", f"ds_read_b64 {vr(aQ+4+2*k if k<2 else aK+2,2)}, v{aR[k]} offset:{LDS_EX+1024}"]
    L+=sr[:2]+seq(42,48,sr[2:])
    wl=[]
    for p in WOLDS: wl+=ringload(0,LOC[w[p]][1],base=wdst[p])
    S=[aQ,aQ+1,aQ+2,aQ+3,aK,aK+1]
    for r in range(4): L+=[f"v_add_f32 v{aQ+r}, v{aQ+r}, v{aO+r}"]
    for r in range(2): L+=[f"v_add_f32 v{aK+r}, v{aK+r}, v{aQ+4+r}"]
    for r in range(4): L+=[f"v_add_f32 v{aO+4+r}, v{aO+4+r}, v{aO+8+r}"]
    for r in range(2): L+=[f"v_add_f32 v{aQ+6+r}, v{aQ+6+r}, v{aK+2+r}"]
    for r in range(4): L+=[f"v_add_f32 v{aQ+r}, v{aQ+r}, v{aO+4+r}"]
    for r in range(2): L+=[f"v_add_f32 v{aK+r}, v{aK+r}, v{aQ+6+r}"]
    m,t=vT0,vT1
    L+=dump(qT,4)+dump(aQ,4)+dump(aK,2)
    vf=fold(aV)
    vm=[f"v_cndmask_b32 v{aV+r}, 0, v{aV+4+r}, {sLOH}" for r in range(2)]+[f"v_cndmask_b32 v{aV+2+r}, v{aV+4+r}, 0, {sLOH}" for r in range(2)]+\
       [f"buffer_store_dwordx4 {vr(aV,4)}, v{aX}, {SRD}, {sKM} offen offset:1024 {'' if 'kmplain' in OPT else 'sc1'}"]
    fill=vf+vm+wl+zero(aO,16)
    def F(n):
        o=[]
        for _ in range(n):
            if fill: o.append(fill.pop(0))
        return o
    L+=[f"v_max3_f32 v{m}, v{S[0]}, v{S[1]}, v{S[2]}", f"v_max3_f32 v{m}, v{m}, v{S[3]}, v{S[4]}", f"v_max_f32 v{m}, v{m}, v{S[5]}"]+F(2)
    L+=[f"v_max_f32_dpp v{m}, v{m}, v{m} row_ror:8 row_mask:0xf bank_mask:0xf", f"v_mov_b32 v{t}, v{m}"]+F(2)
    L+=[f"v_permlane32_swap_b32 v{m}, v{t}"]+F(1)+[f"v_max_f32 v{m}, v{m}, v{t}", f"v_mov_b32 v{t}, v{m}"]+F(2)
    L+=[f"v_permlane16_swap_b32 v{m}, v{t}"]+F(1)+[f"v_max_f32 v{m}, v{m}, v{t}", f"v_mul_f32 v{m}, {sC}, v{m}"]
    for r in S: L+=[f"v_fma_f32 v{r}, v{r}, {sC}, -v{m}"]
    for r in S: L+=[f"v_exp_f32 v{r}, v{r}"]
    L+=F(7)
    Px=aQ+4; Pm=aK+2
    L+=[pk(Px,S[0],S[1]),pk(Px+1,S[2],S[3]),pk(Px+2,S[0],S[1]),pk(Px+3,S[2],S[3]),pk(Pm,S[4],S[5]),pk(Pm+1,S[4],S[5])]
    for r,bm in ((Px,"0xc"),(Px+1,"0xc"),(Px+2,"0x3"),(Px+3,"0x3"),(Pm,"0xc"),(Pm+1,"0x3")):
        L+=[f"v_mov_b32_dpp v{r}, v{r} row_ror:8 row_mask:0xf bank_mask:{bm}"]
    L+=dump(Px,4)+dump(Pm,2)
    L+=[f"s_cmp_eq_u32 {sSTEP}, 63", f"s_cbranch_scc1 L_fin"]
    Ls,O0,O1=aQ,aK+4,aV+4
    L+=[m32(Ls,ONES,Px)]+F(2)+[m32(O0,KV+8,Px)]+F(2)+[m32(O1,KV+12,Px)]+F(2)+[m16(Ls,ONESM,Pm,vr(Ls,4))]+F(2)
    L+=[m16(O0,aV,Pm,vr(O0,4))]+F(2)+[m16(O1,aV+2,Pm,vr(O1,4))]+F(2)+[f"v_rcp_f32 v{m}, v{Ls}"]+F(99)
    for r in range(4): L+=[f"v_mul_f32 v{O0+r}, v{O0+r}, v{m}"]
    for r in range(4): L+=[f"v_mul_f32 v{O1+r}, v{O1+r}, v{m}"]
    oA=[KV,KV+4,KV+8,KV+12]
    L+=[pk(oA[0]+r,O0+r,O1+r) for r in range(4)]
    L+=dump(oA[0],4)+dump(m,1)
    L+=[f"ds_write_b128 v{aX}, {vr(oA[0],4)}"]
    def ws_(i):
        _,u,jj,t_=w[i]; kind,idx=LOC[w[i]]
        b = vr(wdst[i],8) if kind=="l" else f"{kind}[{idx}:{idx+7}]"
        return smf(aO+8*u+4*t_, oA[jj], b)
    L+=T(5)+[ws_(0),ws_(1),"s_waitcnt vmcnt(0) lgkmcnt(0)","s_barrier"]+T(6)
    L+=[f"ds_read_b128 {vr(oA[k+1],4)}, v{aR[k]}" for k in range(3)]
    L+=[ws_(8), f"v_mov_b32 v{vTCH}, {sSTEP}", ws_(9), f"v_add_u32 v{vTCH}, 1, v{vTCH}", ws_(2), "s_mov_b64 exec, 1", f"buffer_store_dword v{vTCH}, off, {SRD}, {sPR} sc1", "s_mov_b64 exec, -1"]+[ws_(i) for i in range(3,8)]
    def part(u,dst,so):
        return [pk(dst+r,aO+8*u+r,aO+8*u+4+r) for r in range(4)]+[f"v_min_u32 v{dst+r}, -2, v{dst+r}" for r in range(4)]+\
               [f"buffer_store_dwordx4 {vr(dst,4)}, v{aP}, {SRD}, {so} offen {sc}"]
    L+=weave([ws_(i) for i in range(10,16)], part(0,aQ,sP0), per=3, lead=2)
    L+=part(1,aQ+4,sP1)
    L+=dump(aQ,8)+T(7)
    upd=[f"s_xor_b32 {sP0}, {sP0}, {1<<18}", f"s_xor_b32 {sP1}, {sP1}, {1<<18}", f"s_add_u32 {sKV}, {sKV}, {0 if 'kvfix' in OPT else 1<<19}", f"s_add_u32 {sKN}, {sKN}, {0 if 'kvfix' in OPT else 1<<19}",
         f"s_add_u32 {sKM}, {sKM}, {1<<18}", f"s_add_u32 {sSTEP}, {sSTEP}, 1"]
    L+=ringload(0,0)+ringload(1,1)+ringload(2,2)+upd+zero(aK,16)
    L+=[f"s_cmp_gt_u32 {sSTEP}, 62", f"s_cbranch_scc1 {tag}_kvok", f"{tag}_kvchk:", f"v_cmp_le_u32 vcc, {sFN}, v0", f"s_cbranch_vccnz {tag}_kvok"]+spin()+\
       [f"buffer_load_dword v0, off, {SRD}, {sFO} sc1", "s_waitcnt vmcnt(0)", f"s_branch {tag}_kvchk", f"{tag}_kvok:",
        f"s_add_u32 {sFO}, {sFO}, 4", f"s_cmp_eq_u32 {sFO}, {sFE}", f"s_addc_u32 {sFN}, {sFN}, 0", f"s_cmp_eq_u32 {sFO}, {sFE}", f"s_cselect_b32 s60, 28, 0", f"s_sub_u32 {sFO}, {sFO}, s60"]
    G=KV; R=aO
    L+=[f"{tag}_in:"]+spin()
    L+=[f"buffer_load_dwordx4 {vr(G,4)}, v{aX}, {SRD}, {sIC} offen sc1", f"buffer_load_dwordx4 {vr(G+4,4)}, v{aX}, {SRD}, {sIC} offen offset:1024 sc1", "s_waitcnt vmcnt(0)"]
    L+=[m32(R,G,RSEL), m32(R,G+4,RSEL,vr(R,4))]+check8(G,vT0)+[f"s_cbranch_vccnz {tag}_in"]+T(8)
    L+=[f"v_permlane32_swap_b32 v{R}, v{R+1}", f"v_permlane32_swap_b32 v{R+2}, v{R+3}", f"v_add_f32 v{R}, v{R}, v{R+1}", f"v_add_f32 v{R+2}, v{R+2}, v{R+3}",
        f"v_permlane16_swap_b32 v{R}, v{R+2}", f"v_add_f32 v{R}, v{R}, v{R+2}",
        f"v_mov_b32_dpp v{R+1}, v{R} quad_perm:[0,0,2,2] row_mask:0xf bank_mask:0xf", f"v_mov_b32_dpp v{R+2}, v{R} quad_perm:[1,1,3,3] row_mask:0xf bank_mask:0xf",
        pk(R,R+1,R+2), f"v_min_u32 v{R}, -2, v{R}", f"buffer_store_dword v{R}, v{aPUB}, {SRD}, {sMN} offen {sc}"]
    L+=dump(R,1)
    if dbg: L+=[f"s_cmp_eq_u32 {sSTEP}, {dbg}", "s_cbranch_scc1 L_end"]
    L+=[f"s_xor_b32 {sMC}, {sMC}, 8192", f"s_xor_b32 {sMN}, {sMN}, 8192", f"s_xor_b32 {sIC}, {sIC}, {1<<18}", f"s_xor_b32 {sIO}, {sIO}, {1<<18}"]+zero(aQ,8)
    L+=T(9)+["s_waitcnt lgkmcnt(0)"]
    if prof:
        L+=[f"s_cmp_lt_u32 {sSTEP}, 3", f"s_cbranch_scc1 {tag}_top"]
        for k in range(9): L+=[f"s_sub_u32 s{67+2*k}, s{68+2*k}, s{66+2*k}", f"s_add_u32 s{88+k}, s{88+k}, s{67+2*k}"]
    L+=[f"s_branch {tag}_top"]
    L,_=autowait(L); A.ext(L)

def body(A, bounded=True):
    prologue(A,bounded)
    A("s_cmp_eq_u32 s49, 0\n s_cbranch_scc1 S_go\n s_branch F_go")
    loop(A,"F","",bounded); loop(A,"S","sc1",bounded)
    A(f"""L_fin:
    s_waitcnt vmcnt(0)
    s_barrier
    v_mov_b32 v0, 64
    s_mov_b64 exec, 1
    buffer_store_dword v0, off, {SRD}, {sPR} sc1
    L_end:
    s_endpgm""")
```

```python
import sys, par, rec1m
from asmlib import *
N="gated_mix__memory_aug_recurrent_mem_tr__glu_gated_bilinear__prompt"
K=N+"_kernel"
par.PROF=len(sys.argv)>2
A=Asm(); A.ext(khdr(K))
A("s_cmp_ge_u32 s2, 256\n s_cbranch_scc1 L_exit\n s_and_b32 s3, s2, 7\n s_cmp_eq_u32 s3, 0\n s_cbranch_scc1 L_rec")
par.parallel(A)
A("L_exit:\n s_endpgm\n L_rec:")
rec1m.body(A)
src="; @launch grid=(256,1,1) block=(256,1,1) lds=163840\n"+par.HDR+A.finish()+kdesc(K,512,256)
open(sys.argv[1] if len(sys.argv)>1 else f"../cdna_kernels/{N}.s","w").write(src)
```

```python
from asmlib import *
MB=1<<20
WS_KV=0; WS_KM=32*MB; WS_Q=64*MB; WS_O=80*MB; WS_H=96*MB
FL=49*MB
FL_KV=FL
FL_PR=FL+4096
FL_H=FL+8192
FL_O=FL+32768
SPIN=0x80000
def vr(b,n=1,k="v"): return f"{k}{b}" if n==1 else f"{k}[{b}:{b+n-1}]"
def m32(d,a,b,c=None): return f"v_mfma_f32_16x16x32_bf16 {vr(d,4)}, {a}, {b}, {'0' if c is None else vr(c,4)}"
def m16(d,a,b,c=None): return f"v_mfma_f32_16x16x16_bf16 {vr(d,4)}, {a}, {b}, {'0' if c is None else vr(c,4)}"
def pk(d,a,b): return f"v_cvt_pk_bf16_f32 v{d}, v{a}, v{b}"
WS="s[8:11]"; WT="s[32:35]"; XS="s[36:39]"; DBG="s[12:15]"; OUT="s[16:19]"
sW="s20"; sT="s21"; sSTG="s22"; sSEG="s23"; sA="s24"; sB="s25"; sC="s26"; sD="s27"; sXB="s28"; sE="s29"; sF="s30"; sG="s31"
vL=0; vL16=1; vTR0=2; vTR1=3; vWO=4; vXO=5; vXR=6; vZ=7; vONE=8; vt=9
def setup(A):
    A(f"""
    v_lshrrev_b32 v2, 6, v0
    v_and_b32 v0, 63, v0
    s_load_dwordx2 s[8:9], s[0:1], 112
    s_load_dwordx2 s[12:13], s[0:1], 104
    s_load_dwordx2 s[16:17], s[0:1], 96
    s_load_dwordx2 s[36:37], s[0:1], 0
    s_load_dwordx8 s[40:47], s[0:1], 16
    s_load_dwordx8 s[48:55], s[0:1], 64
    v_readfirstlane_b32 {sW}, v2
    s_mov_b32 s10, 0x10000000
    s_mov_b32 s11, 0x20000
    s_mov_b32 s14, 256
    s_mov_b32 s15, 0x20000
    s_mov_b32 s18, 0x200000
    s_mov_b32 s19, 0x20000
    s_mov_b32 s35, 0x20000
    s_mov_b32 s38, 0x200000
    s_mov_b32 s39, 0x20000
    s_and_b32 {sT}, s2, 7
    s_sub_u32 {sT}, {sT}, 1
    s_lshl_b32 {sT}, {sT}, 5
    s_lshr_b32 {sA}, s2, 3
    s_add_u32 {sT}, {sT}, {sA}
    s_lshl_b32 {sSTG}, {sW}, 15
    v_lshlrev_b32 v{vL16}, 4, v0
    v_mov_b32 v{vZ}, 0
    v_mov_b32 v{vONE}, 1
    """)
    A(f"""
    v_lshrrev_b32 v{vt}, 4, v0
    v_bfe_u32 v{vt+1}, v0, 2, 2
    v_lshl_add_u32 v{vt+1}, v{vt}, 3, v{vt+1}
    v_lshlrev_b32 v{vt+1}, 6, v{vt+1}
    v_and_b32 v{vt+2}, 3, v0
    v_lshl_add_u32 v{vt+1}, v{vt+2}, 3, v{vt+1}
    v_and_b32 v{vt+2}, 1, v{vt}
    v_lshl_add_u32 v{vt+1}, v{vt+2}, 5, v{vt+1}
    v_add_u32 v{vTR0}, {sSTG}, v{vt+1}
    v_xor_b32 v{vTR1}, 32, v{vTR0}
    v_and_b32 v{vt+1}, 15, v0
    v_lshlrev_b32 v{vt+1}, 10, v{vt+1}
    v_lshl_add_u32 v{vt+1}, v{vt}, 4, v{vt+1}
    s_lshl_b32 {sA}, {sW}, 8
    v_add_u32 v{vXO}, {sA}, v{vt+1}
    s_waitcnt lgkmcnt(0)
    """)
def wvoff(A, pitch, sigma, scol):
    A(f"v_lshrrev_b32 v{vt}, 2, v0")
    if sigma:
        A(f"""v_bfe_u32 v{vt+1}, v0, 4, 1
        v_lshlrev_b32 v{vt+1}, 4, v{vt+1}
        v_lshrrev_b32 v{vt+2}, 5, v0
        v_lshl_add_u32 v{vt+1}, v{vt+2}, 2, v{vt+1}
        v_and_b32 v{vt}, 3, v{vt}
        v_add_u32 v{vt}, v{vt}, v{vt+1}""")
    A(f"""v_mul_u32_u24 v{vt}, {pitch}, v{vt}
    v_lshrrev_b32 v{vt+1}, 5, v0
    v_lshlrev_b32 v{vt+1}, 1, v{vt+1}
    v_and_b32 v{vt+2}, 3, v0
    v_xor_b32 v{vt+1}, v{vt+1}, v{vt+2}
    v_lshl_add_u32 v{vt}, v{vt+1}, 4, v{vt}
    v_add_u32 v{vWO}, {scol}, v{vt}""")
def wload(items, depth=16):
    L=[]
    def issue(i):
        it=items[i]; o=list(it.get("pre",[])); sb,*im=it["so"]
        for hf in (0,1):
            o+=[f"s_add_u32 m0, {sSTG}, {(i%depth)*2048+hf*1024}",
                f"s_add_u32 {sG}, {sb}, {im[hf]}" if sb else f"s_mov_b32 {sG}, {im[hf]}",
                f"buffer_load_dwordx4 v{it.get('vo',vWO)}, {WT}, {sG} offen lds ;#w{i}"]
        return o
    n=len(items)
    for i in range(min(depth,n)): L+=issue(i)
    for i in range(n):
        k,r=items[i]["dst"]
        L+=[f"WAITV w{i}"]
        for s in (0,1):
            for hf in (0,1):
                L+=[f"ds_read_b64_tr_b16 {vr(r+4*s+2*hf,2,k)}, v{vTR0+s} offset:{(i%depth)*2048+256*hf} ;#r{i}"]
        if i>=1 and i-1+depth<n: L+=[f"WAITL r{i-1}"]+issue(i-1+depth)
    return L
def setw(lo, size): return [f"s_mov_b32 s32, s{lo}", f"s_mov_b32 s33, s{lo+1}", f"s_mov_b32 s34, {size}"]
def xdma(sseg):
    L=[f"s_lshl_b32 {sA}, {sseg}, 15", f"s_lshl_b32 {sB}, {sW}, 13", f"s_add_u32 {sB}, {sB}, {sXB}"]
    for kk in range(4):
        for t in (0,1):
            L+=[f"s_add_u32 m0, {sB}, {(kk*2+t)*1024}", f"s_add_u32 {sG}, {sA}, {t*16384+kk*64}", f"buffer_load_dwordx4 v{vXO}, {XS}, {sG} offen lds"]
    return L
XB0=0x20000
XR=16
def stream(A, tag, stride, mf, epi, nst, sig):
    A(f"""v_add_u32 v{vXR}, {XB0}, v{vL16}
    s_mov_b32 {sXB}, 0
    s_mov_b32 {sF}, 0
    s_waitcnt vmcnt(0) lgkmcnt(0)
    {tag}_top:
    s_waitcnt vmcnt({nst})
    s_barrier
    s_add_u32 {sE}, {sSEG}, {stride}
    s_min_u32 {sE}, {sE}, 63""")
    L=[]
    rd=lambda ks: [f"ds_read_b128 {vr(XR+8*(ks%4)+4*t,4)}, v{vXR} offset:{(2*ks+t)*1024}" for t in (0,1)]
    L+=rd(0)+rd(1)+rd(2)+xdma(sE)
    for ks in range(16):
        g=mf(ks,0,vr(XR+8*(ks%4),4))+mf(ks,1,vr(XR+8*(ks%4)+4,4))
        if ks+3<16: g=g[:1]+rd(ks+3)[:1]+g[1:2]+rd(ks+3)[1:]+g[2:]
        L+=g
        if ks==8 and sig:
            L+=["s_waitcnt vmcnt(8)", f"s_cmp_eq_u32 {sF}, 0", f"s_cbranch_scc1 {tag}_nosig"]+sig+[f"{tag}_nosig:"]
    L+=epi
    L,_=autowait(L); A.ext(L)
    A(f"""v_xor_b32 v{vXR}, {XB0}, v{vXR}
    s_xor_b32 {sXB}, {sXB}, {XB0}
    s_add_u32 {sF}, {sF}, 1
    s_add_u32 {sSEG}, {sSEG}, {stride}
    s_cmp_lt_u32 {sSEG}, 64
    s_cbranch_scc1 {tag}_top
    s_waitcnt vmcnt(0)""")
    if sig: A.ext(sig)
    A("s_barrier")
sH="s56"; sRG="s57"; sSP="s79"
vL4=251
def spin(): return [f"s_add_u32 {sSP}, {sSP}, 1", f"s_cmp_gt_u32 {sSP}, {SPIN}", "s_cbranch_scc1 L_exit"]
def handshake(A):
    A(f"s_mov_b32 {sSP}, 0\n P_hs:"); A.ext(spin())
    A(f"""buffer_load_dwordx2 v[{vt+1}:{vt+2}], v{vZ}, {DBG}, 0 offen offset:248 sc1
    s_waitcnt vmcnt(0)
    v_add_u32 v{vt}, v{vt+1}, v{vt+2}
    v_mul_lo_u32 v{vt}, v{vt}, v{vt+3}
    v_lshrrev_b32 v{vt}, 24, v{vt}
    v_cmp_gt_u32 vcc, 32, v{vt}
    s_cbranch_vccnz P_hs""".replace(f"v_add_u32 v{vt}, v{vt+1}", f"v_mov_b32 v{vt+3}, 0x01010101\n v_add_u32 v{vt}, v{vt+1}"))
def poll(tag, soff, n, thr):
    return [f"v_min_u32 v{vt+2}, {n-1}, v0", f"v_lshlrev_b32 v{vt+2}, 2, v{vt+2}", f"{tag}:"]+spin()+\
        [f"buffer_load_dword v{vt+3}, v{vt+2}, {WS}, {soff} offen sc1", "s_waitcnt vmcnt(0)", f"v_cmp_gt_u32 vcc, {thr}, v{vt+3}", f"s_cbranch_vccnz {tag}"]
def P1(A, flags):
    A(f"""s_mul_i32 {sH}, {sT}, 9363
    s_lshr_b32 {sH}, {sH}, 16
    s_mul_i32 {sA}, {sH}, 7
    s_sub_u32 {sRG}, {sT}, {sA}
    s_mov_b32 {sSEG}, {sRG}
    s_mov_b32 {sXB}, {XB0}""")
    A.ext(xdma(sSEG))
    A(f"s_lshl_b32 {sA}, {sH}, 8\n s_lshl_b32 {sB}, {sW}, 6\n s_add_u32 {sA}, {sA}, {sB}")
    wvoff(A, 8192, False, sA)
    W={"K":("a",0,42),"V":("a",128,44),"Q":("v",128,40)}
    items=[]
    for m in "KVQ":
        k,b,lo=W[m]
        for ks in range(16): items.append(dict(pre=setw(lo,4*MB) if ks==0 else [], so=(None,32*ks*8192,(32*ks+16)*8192), dst=(k,b+8*ks)))
    L,_=autowait(wload(items)); A.ext(L)
    AC=48
    acc=lambda m,t,s: AC+16*"KVQ".index(m)+8*t+4*s
    def mf(ks,t,x):
        o=[]
        for m in "KQV":
            k,b,_=W[m]
            for s in (0,1):
                w=vr(b+8*ks+4*s,4,k); d=acc(m,t,s); c=None if ks==0 else d
                o.append(m32(d,x,w,c) if m=="V" else m32(d,w,x,c))
        return o
    PK=96
    sc="sc1" if flags else ""
    epi=[f"s_lshl_b32 {sA}, {sSEG}, 5", f"s_add_u32 {sA}, {sA}, {sH}", f"s_lshl_b32 {sA}, {sA}, 2", f"s_add_u32 {sA}, {sA}, {sW}",
         f"s_lshl_b32 {sB}, {sA}, 11", f"s_add_u32 {sB}, {sB}, {WS_Q}", f"s_lshl_b32 {sA}, {sA}, 12"]
    def frag(dst,a0,a1): return [pk(dst,a0,a0+1),pk(dst+1,a0+2,a0+3),pk(dst+2,a1,a1+1),pk(dst+3,a1+2,a1+3)]
    for t in (0,1):
        epi+=frag(PK+4*t,acc("K",t,0),acc("K",t,1))+[f"buffer_store_dwordx4 {vr(PK+4*t,4)}, v{vL16}, {WS}, {sA} offen offset:{1024*t} {sc}"]
    for t in (0,1):
        epi+=frag(PK+8+4*t,acc("Q",t,0),acc("Q",t,1))+[f"buffer_store_dwordx4 {vr(PK+8+4*t,4)}, v{vL16}, {WS}, {sB} offen offset:{1024*t}"]
    for s in (0,1):
        epi+=frag(PK+16+4*s,acc("V",0,s),acc("V",1,s))+[f"buffer_store_dwordx4 {vr(PK+16+4*s,4)}, v{vL16}, {WS}, {sA} offen offset:{2048+1024*s} {sc}"]
    sig=[f"v_mov_b32 v{vt}, {sF}", "s_mov_b64 exec, 1", f"buffer_store_dword v{vt}, v{vZ}, {WS}, {sD} offen sc1", "s_mov_b64 exec, -1"] if flags else None
    if flags:
        A(f"""s_lshl_b32 {sD}, {sH}, 2
        s_add_u32 {sD}, {sD}, {sW}
        s_lshl_b32 {sD}, {sD}, 3
        s_add_u32 {sD}, {sD}, {sRG}
        s_lshl_b32 {sD}, {sD}, 2
        s_add_u32 {sD}, {sD}, {FL_KV}""")
        handshake(A)
        A.ext(stamp(1,v=vt)+(["s_waitcnt vmcnt(0)"] if PROF else []))
    stream(A,"P1",7,mf,epi,6,sig)
def P2(A, flags):
    A(f"""s_cmp_ge_u32 {sT}, 220
    s_cbranch_scc1 P2_end
    s_mul_i32 {sC}, {sT}, 3277
    s_lshr_b32 {sC}, {sC}, 16
    s_mul_i32 {sA}, {sC}, 20
    s_sub_u32 {sSEG}, {sT}, {sA}
    s_lshl_b32 {sC}, {sC}, 2
    s_add_u32 {sC}, {sC}, {sW}
    s_min_u32 {sC}, {sC}, 42
    s_mov_b32 {sXB}, {XB0}""")
    A.ext(xdma(sSEG))
    A(f"s_lshl_b32 {sA}, {sC}, 6")
    wvoff(A, 2752, False, sA)
    items=[]
    for mi in (0,1):
        for ks in range(16): items.append(dict(pre=setw(48+2*mi,512*2752) if ks==0 else [], so=(None,32*ks*2752,(32*ks+16)*2752), dst=("a",128*mi+8*ks)))
    L,_=autowait(wload(items)); A.ext(L)
    AC=48
    def mf(ks,t,x):
        return [m32(AC+16*mi+8*t+4*s, vr(128*mi+8*ks+4*s,4,"a"), x, None if ks==0 else AC+16*mi+8*t+4*s) for mi in (0,1) for s in (0,1)]
    PK=96
    epi=[f"s_mul_i32 {sA}, {sSEG}, 86", f"s_add_u32 {sA}, {sA}, {sC}", f"s_lshl_b32 {sA}, {sA}, 10", f"s_add_u32 {sA}, {sA}, {WS_H}", f"s_add_u32 {sB}, {sA}, {43*1024}"]
    for t in (0,1):
        a=AC+8*t
        epi+=[f"v_mul_f32 v{a+r}, v{a+r}, v{a+16+r}" for r in range(8)]+[pk(PK+4*t+r,a+2*r,a+2*r+1) for r in range(4)]
        epi+=[f"buffer_store_dwordx4 {vr(PK+4*t,4)}, v{vL16}, {WS}, {(sA,sB)[t]} offen {'sc1' if flags else ''}"]
    stream(A,"P2",20,mf,epi,2,None)
    if flags:
        A(f"""s_cmp_lg_u32 {sW}, 0
        s_cbranch_scc1 P2_end
        s_mul_i32 {sC}, {sT}, 3277
        s_lshr_b32 {sC}, {sC}, 16
        s_mul_i32 {sA}, {sC}, 20
        s_sub_u32 {sA}, {sT}, {sA}
        s_lshl_b32 {sA}, {sA}, 5
        s_add_u32 {sA}, {sA}, {sC}
        s_lshl_b32 {sA}, {sA}, 2
        s_add_u32 {sA}, {sA}, {FL_H}
        s_mov_b64 exec, 1
        buffer_store_dword v{vONE}, v{vZ}, {WS}, {sA} offen sc1
        s_mov_b64 exec, -1""")
    A("P2_end:")
sMASK=60
sCS="s76"
ONES=240; HALF=244; NINF=246
def P3init(A):
    A(f"""v_and_b32 v{vt}, 15, v0
    v_lshrrev_b32 v{vt+1}, 4, v0
    v_lshlrev_b32 v{vt+1}, 2, v{vt+1}
    v_sub_u32 v{vt}, v{vt}, v{vt+1}
    s_lshr_b32 {sA}, {sW}, 1
    s_lshl_b32 {sA}, {sA}, 4
    v_add_u32 v{vt}, {sA}, v{vt}
    s_mov_b32 {sCS}, 0x3e0293ee
    v_mov_b32 v{NINF}, 0xff800000""")
    for tk in (0,1):
        for r in range(4): A(f"v_cmp_le_i32 s[{sMASK+8*tk+2*r}:{sMASK+8*tk+2*r+1}], {16*tk+r}, v{vt}")
    for k in range(4): A(f"v_mov_b32 v{ONES+k}, 0x3f803f80")
    for k in range(2): A(f"v_mov_b32 v{HALF+k}, 0x3f003f00")
Q3=104; KX3=120; VX3=152; KM3=168; VM3=184; S3=192; P3r=204; O3=212; L3=228
def P3pre(seg):
    L=[f"s_lshl_b32 {sA}, {seg}, 5", f"s_add_u32 {sA}, {sA}, {sH}", f"s_lshl_b32 {sB}, {sA}, 13", f"s_add_u32 {sB}, {sB}, {WS_Q}", f"s_lshl_b32 {sA}, {sA}, 14",
       f"s_lshr_b32 {sC}, {sW}, 1", f"s_lshl_b32 {sC}, {sC}, 10", f"s_add_u32 {sB}, {sB}, {sC}"]
    for w in range(4):
        L+=[f"s_add_u32 {sG}, {sB}, {2048*w}", f"buffer_load_dwordx4 {vr(Q3+4*w,4)}, v{vL16}, {WS}, {sG} offen",
            f"s_add_u32 {sG}, {sA}, {4096*w}"]+[f"buffer_load_dwordx4 {vr(KX3+16*tk+4*w,4)}, v{vL16}, {WS}, {sG} offen offset:{1024*tk}" for tk in (0,1)]
    L+=[f"s_and_b32 {sC}, {sW}, 1", f"s_lshl_b32 {sC}, {sC}, 13", f"s_add_u32 {sA}, {sA}, {sC}"]
    for k in (0,1):
        L+=[f"s_add_u32 {sG}, {sA}, {4096*k}"]+[f"buffer_load_dwordx4 {vr(VX3+8*k+4*s,4)}, v{vL16}, {WS}, {sG} offen offset:{2048+1024*s}" for s in (0,1)]
    return L
def P3x():
    L=[]
    for tk in (0,1):
        for w in range(4): L.append(m32(S3+4*tk, vr(KX3+16*tk+4*w,4), vr(Q3+4*w,4), None if w==0 else S3+4*tk))
    return L
def P3post(seg, sc):
    L=[f"s_lshl_b32 {sA}, {seg}, 5", f"s_add_u32 {sA}, {sA}, {sH}", f"s_lshl_b32 {sA}, {sA}, 13", f"s_add_u32 {sA}, {sA}, {WS_KM}"]
    for w in range(4): L+=[f"s_add_u32 {sG}, {sA}, {2048*w}", f"buffer_load_dwordx4 {vr(KM3+4*w,4)}, v{vL16}, {WS}, {sG} offen {sc}"]
    L+=[f"s_and_b32 {sC}, {sW}, 1", f"s_lshl_b32 {sC}, {sC}, 12", f"s_add_u32 {sA}, {sA}, {sC}"]
    for k in (0,1): L+=[f"buffer_load_dwordx4 {vr(VM3+4*k,4)}, v{vL16}, {WS}, {sA} offen offset:{1024+2048*k} {sc}"]
    L+=P3x()
    for k in range(8): L.append(f"v_cndmask_b32 v{S3+k}, v{NINF}, v{S3+k}, s[{sMASK+2*k}:{sMASK+2*k+1}]")
    m,t=vt,vt+1
    L+=[f"v_max3_f32 v{m}, v{S3}, v{S3+1}, v{S3+2}", f"v_max3_f32 v{t}, v{S3+3}, v{S3+4}, v{S3+5}", f"v_max3_f32 v{m}, v{m}, v{S3+6}, v{S3+7}"]
    for w in range(4): L.append(m32(S3+8, vr(KM3+4*w,4), vr(Q3+4*w,4), None if w==0 else S3+8))
    L+=[f"v_max3_f32 v{t}, v{t}, v{S3+8}, v{S3+9}", f"v_max3_f32 v{m}, v{m}, v{S3+10}, v{S3+11}", f"v_max_f32 v{m}, v{m}, v{t}",
        f"v_mov_b32 v{t}, v{m}", f"v_permlane32_swap_b32 v{m}, v{t}", f"v_max_f32 v{m}, v{m}, v{t}",
        f"v_mov_b32 v{t}, v{m}", f"v_permlane16_swap_b32 v{m}, v{t}", f"v_max_f32 v{m}, v{m}, v{t}", f"v_mul_f32 v{m}, {sCS}, v{m}"]
    L+=[f"v_fma_f32 v{S3+k}, v{S3+k}, {sCS}, -v{m}" for k in range(12)]+[f"v_exp_f32 v{S3+k}, v{S3+k}" for k in range(12)]
    L+=[pk(P3r+k,S3+2*k,S3+2*k+1) for k in range(6)]
    L+=[m32(L3,vr(ONES,4),vr(P3r,4))]+[m32(O3+4*k,vr(VX3+4*k,4),vr(P3r,4)) for k in range(4)]
    L+=[m16(L3,vr(HALF,2),vr(P3r+4,2),L3)]+[m16(O3+4*k,vr(VM3+2*k,2),vr(P3r+4,2),O3+4*k) for k in range(4)]
    L+=[f"s_lshl_b32 {sA}, {seg}, 1", f"s_lshr_b32 {sC}, {sW}, 1", f"s_add_u32 {sA}, {sA}, {sC}", f"s_lshl_b32 {sA}, {sA}, 5", f"s_add_u32 {sA}, {sA}, {sH}",
        f"s_lshl_b32 {sA}, {sA}, 1", f"s_and_b32 {sC}, {sW}, 1", f"s_add_u32 {sA}, {sA}, {sC}", f"s_lshl_b32 {sA}, {sA}, 11", f"s_add_u32 {sA}, {sA}, {WS_O}"]
    L+=[f"v_rcp_f32 v{m}, v{L3}"]+[f"v_mul_f32 v{O3+k}, v{O3+k}, v{m}" for k in range(16)]
    for k in (0,1):
        L+=[pk(S3+4*k+r,O3+8*k+2*r,O3+8*k+2*r+1) for r in range(4)]+[f"buffer_store_dwordx4 {vr(S3+4*k,4)}, v{vL16}, {WS}, {sA} offen offset:{1024*k} {sc}"]
    return L
sCB="s58"; sRG4="s59"; sRED="s77"; sBB="s78"
RG=16; A4=80; WD=104; GW=192; vRED=248; vOO=249; vBB=250
LDS_RED=0x20000; LDS_BB=0x8000*0+0x10000
def ring(items, depth=16):
    L=[]; n=len(items)
    for i in range(min(depth,n)): L+=items[i][0](RG+4*(i%depth))
    for i in range(n):
        L+=items[i][1](vr(RG+4*(i%depth),4))
        if i>=1 and i-1+depth<n: L+=items[i-1+depth][0](RG+4*((i-1)%depth))
    return L
def P4init(A):
    A(f"""s_and_b32 {sCB}, {sT}, 15
    s_lshr_b32 {sRG4}, {sT}, 4
    s_lshl_b32 {sA}, {sCB}, 6""")
    wvoff(A, 1024, True, sA)
    items=[]
    for k in range(11):
        pre=setw(52,1376*1024) if k==0 else []
        pre+=[f"s_mul_i32 {sC}, {sW}, 11", f"s_add_u32 {sC}, {sC}, {k}", f"s_min_u32 {sC}, {sC}, 42", f"s_lshl_b32 {sC}, {sC}, 15"]
        items.append(dict(pre=pre, so=(sC,0,8192), dst=("v",WD+8*k)))
    for k in range(32):
        pre=setw(46,4*MB)+[f"s_lshl_b32 {sD}, {sW}, 20"] if k==0 else []
        items.append(dict(pre=pre, so=(sD,k*32768,k*32768+8192), dst=("a",8*k)))
    L=[f"v_lshrrev_b32 v{vt}, 4, v0", f"v_lshlrev_b32 v{vt}, 4, v{vt}", f"s_lshl_b32 {sA}, {sW}, 8", f"v_add_u32 v{vt}, {sA}, v{vt}"]
    L+=[f"global_load_dwordx4 {vr(GW+4*k,4)}, v{vt}, s[54:55] offset:{64*k}" for k in range(4)]
    L,_=autowait(L+wload(items)); A.ext(L)
    A(f"""s_waitcnt vmcnt(0) lgkmcnt(0)
    s_cmp_lg_u32 {sW}, 3
    s_cbranch_scc1 P4_nz""")
    for k in range(8): A(f"v_mov_b32 v{WD+80+k}, 0")
    A(f"""P4_nz:
    s_lshl_b32 {sA}, {sW}, 10
    v_add_u32 v{vRED}, {sA}, v{vL16}
    v_and_b32 v{vt}, 15, v0
    v_lshlrev_b32 v{vt}, 10, v{vt}
    v_lshrrev_b32 v{vt+1}, 4, v0
    v_lshl_add_u32 v{vOO}, v{vt+1}, 3, v{vt}
    s_lshl_b32 {sA}, {sW}, 11
    s_add_u32 {sA}, {sA}, 0x10000
    v_add_u32 v{vBB}, {sA}, v{vL16}
    s_barrier""")
def reduce4(extra_w=[], extra_r=[]):
    L=[f"ds_write_b128 v{vRED}, {vr(A4+4*k,4)} offset:{4096*k}" for k in range(4)]+extra_w
    L+=[f"s_mul_i32 {sA}, {sW}, 3072", f"v_add_u32 v{vt}, {sA}, v{vRED}", "s_waitcnt lgkmcnt(0)", "s_barrier"]
    L+=[f"ds_read_b128 {vr(A4+4*k,4)}, v{vt} offset:{1024*k}" for k in range(4)]+extra_r
    L+=[f"v_xor_b32 v{vRED}, 0x8000, v{vRED}"]
    for r in range(4): L+=[f"v_add_f32 v{A4+r}, v{A4+r}, v{A4+4+r}", f"v_add_f32 v{A4+8+r}, v{A4+8+r}, v{A4+12+r}"]
    for r in range(4): L+=[f"v_add_f32 v{A4+r}, v{A4+r}, v{A4+8+r}"]
    return L
def P4b(A, sc):
    A(f"s_mov_b32 {sSEG}, {sRG4}\n v_mov_b32 v{vt+5}, v{vBB}\n P4b_top:")
    Z=A4+16
    it=[]
    for kk in range(4):
        for t in (0,1):
            it.append((lambda r,kk=kk,t=t: [f"s_add_u32 {sG}, {sE}, {t*16384+kk*64}", f"buffer_load_dwordx4 {vr(r,4)}, v{vXO}, {XS}, {sG} offen"],
                       lambda x,kk=kk,t=t: [m32(Z+4*t, vr(GW+4*kk,4), x, None if kk==0 else Z+4*t)]))
    for k in range(11):
        for t in (0,1):
            it.append((lambda r,k=k,t=t: [f"s_add_u32 {sG}, {sF if k<10 else sD}, {t*43*1024+(k*1024 if k<10 else 0)}", f"buffer_load_dwordx4 {vr(r,4)}, v{vL16}, {WS}, {sG} offen {sc}"],
                       lambda x,k=k,t=t: [m32(A4+8*t+4*s, vr(WD+8*k+4*s,4), x, None if k==0 else A4+8*t+4*s) for s in (0,1)]))
    L=[f"s_lshl_b32 {sE}, {sSEG}, 15", f"s_mul_i32 {sA}, {sSEG}, 86", f"s_mul_i32 {sB}, {sW}, 11", f"s_add_u32 {sC}, {sB}, 10", f"s_min_u32 {sC}, {sC}, 42",
       f"s_add_u32 {sF}, {sA}, {sB}", f"s_lshl_b32 {sF}, {sF}, 10", f"s_add_u32 {sF}, {sF}, {WS_H}", f"s_add_u32 {sD}, {sA}, {sC}", f"s_lshl_b32 {sD}, {sD}, 10", f"s_add_u32 {sD}, {sD}, {WS_H}"]
    if sc:
        L=[f"s_mul_i32 {sA}, {sSEG}, 3277", f"s_lshr_b32 {sA}, {sA}, 16", f"s_mul_i32 {sA}, {sA}, 20", f"s_sub_u32 {sA}, {sSEG}, {sA}", f"s_lshl_b32 {sA}, {sA}, 7", f"s_add_u32 {sA}, {sA}, {FL_H}"]+poll("P4b_poll",sA,11,1)+L
    L+=ring(it)
    zw=[f"s_mul_i32 {sA}, {sW}, 1020", f"v_subrev_u32 v{vt+1}, {sA}, v{vRED}"]+[f"ds_write_b32 v{vt+1}, v{Z+4*t} offset:{0x4000+1024*t}" for t in (0,1)]+\
       [f"s_lshr_b32 {sB}, {sW}, 1", f"s_sub_u32 {sB}, {sB}, {sW}", f"s_lshl_b32 {sB}, {sB}, 10", f"v_add_u32 v{vt+2}, {sB}, v{vRED}"]
    zr=[f"ds_read_b128 {vr(Z,4)}, v{vt+2} offset:{0x4000}"]
    L+=reduce4(zw,zr)
    L+=[f"v_add_f32 v{Z}, v{Z}, v{Z+1}", f"v_add_f32 v{Z+2}, v{Z+2}, v{Z+3}", f"v_add_f32 v{Z}, v{Z}, v{Z+2}", f"v_mul_f32 v{Z}, 0xbfb8aa3b, v{Z}", f"v_exp_f32 v{Z}, v{Z}",
        f"v_add_f32 v{Z}, 1.0, v{Z}", f"v_rcp_f32 v{Z}, v{Z}", f"v_sub_f32 v{Z+1}, 1.0, v{Z}"]+[f"v_mul_f32 v{A4+r}, v{A4+r}, v{Z+1}" for r in range(4)]
    L+=[f"ds_write_b128 v{vt+5}, {vr(A4,4)}", f"ds_write_b32 v{vt+5}, v{Z} offset:1024", f"v_add_u32 v{vt+5}, 0x2000, v{vt+5}"]
    L,_=autowait(L); A.ext(L)
    A(f"s_add_u32 {sSEG}, {sSEG}, 14\n s_cmp_lt_u32 {sSEG}, 64\n s_cbranch_scc1 P4b_top")
def P4a(seg, sc):
    it=[]
    for k in range(32):
        for t in (0,1):
            it.append((lambda r,k=k,t=t: ([f"s_add_u32 {sG}, {sE}, {(k>>2)*4096}", f"s_add_u32 {sF}, {sG}, {128*1024}"] if (k&3)==0 and t==0 else [])+[f"buffer_load_dwordx4 {vr(r,4)}, v{vL16}, {WS}, {(sG,sF)[t]} offen offset:{(k&3)*1024} {sc}"],
                       lambda x,k=k,t=t: [m32(A4+8*t+4*s, vr(8*k+4*s,4,"a"), x, None if k==0 else A4+8*t+4*s) for s in (0,1)]))
    L=[f"s_lshl_b32 {sE}, {seg}, 18", f"s_lshl_b32 {sA}, {sW}, 15", f"s_add_u32 {sE}, {sE}, {sA}", f"s_add_u32 {sE}, {sE}, {WS_O}"]
    L+=ring(it)
    B=A4+16
    L+=reduce4([],[f"ds_read_b128 {vr(B,4)}, v{vBB}", f"ds_read_b32 v{B+4}, v{vBB} offset:1024"])
    L+=[f"v_add_u32 v{vBB}, 0x2000, v{vBB}", f"s_lshl_b32 {sA}, {seg}, 15", f"s_lshr_b32 {sB}, {sW}, 1", f"s_lshl_b32 {sB}, {sB}, 14", f"s_add_u32 {sA}, {sA}, {sB}",
        f"s_lshl_b32 {sB}, {sCB}, 6", f"s_add_u32 {sA}, {sA}, {sB}", f"s_and_b32 {sB}, {sW}, 1", f"s_lshl_b32 {sB}, {sB}, 5", f"s_add_u32 {sA}, {sA}, {sB}"]
    L+=[f"v_fma_f32 v{A4+r}, v{A4+r}, v{B+4}, v{B+r}" for r in range(4)]+[pk(A4,A4,A4+1),pk(A4+1,A4+2,A4+3), f"buffer_store_dwordx2 {vr(A4,2)}, v{vOO}, {OUT}, {sA} offen"]
    return L
sS3="s80"; sS4="s81"
sPRG="s82"; sOF="s83"
def tasks(A):
    A(f"""s_mov_b32 {sS3}, {sRG}
    s_mov_b32 {sS4}, {sRG4}
    s_lshl_b32 {sPRG}, {sH}, 7
    s_add_u32 {sPRG}, {sPRG}, {FL_PR}
    s_lshl_b32 {sOF}, {sS4}, 9
    s_add_u32 {sOF}, {sOF}, {FL_O}
    v_lshlrev_b32 v{vL4}, 3, v0""")
    A.ext(P3pre(sS3))
    A("T_top:"); A.ext(spin())
    A(f"""buffer_load_dword v{vt+2}, off, {WS}, {sPRG} sc1
    buffer_load_dwordx2 v[{vt+3}:{vt+4}], v{vL4}, {WS}, {sOF} offen sc1
    s_waitcnt vmcnt(0)
    v_cmp_lt_u32 vcc, {sS3}, v{vt+2}
    s_cbranch_vccz T_4""")
    L=P3post(sS3,"sc1")
    L+=[f"s_lshl_b32 {sD}, {sS3}, 5", f"s_add_u32 {sD}, {sD}, {sH}", f"s_lshl_b32 {sD}, {sD}, 2", f"s_add_u32 {sD}, {sD}, {sW}", f"s_lshl_b32 {sD}, {sD}, 2", f"s_add_u32 {sD}, {sD}, {FL_O}",
        f"s_add_u32 {sS3}, {sS3}, 7", f"s_cmp_lt_u32 {sS3}, 64", f"s_cselect_b32 {sE}, {sS3}, {sRG}"]+P3pre(sE)+\
       ["s_waitcnt vmcnt(16)", "s_mov_b64 exec, 1", f"buffer_store_dword v{vONE}, v{vZ}, {WS}, {sD} offen sc1", "s_mov_b64 exec, -1"]
    L,_=autowait(L); A.ext(L)
    A.ext(stamp(6))
    A(f"""s_branch T_top
    T_4:
    s_cmp_le_u32 {sS3}, {sS4}
    s_cbranch_scc0 T_5
    s_cmp_lt_u32 {sS3}, 64
    s_cbranch_scc1 T_top
    T_5:
    s_cmp_ge_u32 {sS4}, 64
    s_cbranch_scc1 L_exit
    v_min_u32 v{vt+3}, v{vt+3}, v{vt+4}
    v_cmp_eq_u32 vcc, 0, v{vt+3}
    s_cbranch_vccnz T_top""")
    L,_=autowait(P4a(sS4,"sc1")); A.ext(L)
    A.ext(stamp(7))
    A(f"""s_add_u32 {sS4}, {sS4}, 14
    s_min_u32 {sOF}, {sS4}, 63
    s_lshl_b32 {sOF}, {sOF}, 9
    s_add_u32 {sOF}, {sOF}, {FL_O}
    s_branch T_top""")
WS_DBG=50*MB
PROF=False
def stamp(k, sw=None, v=252):
    if not PROF: return []
    return ["s_memrealtime s[84:85]", "s_lshl_b32 s86, s2, 2", f"s_add_u32 s86, s86, {sw or sW}", "s_lshl_b32 s86, s86, 6", f"s_add_u32 s86, s86, {WS_DBG+4*k}",
            "s_waitcnt lgkmcnt(0)", f"v_mov_b32 v{v}, s84", f"buffer_store_dword v{v}, off, s[8:11], s86"]
def parallel(A):
    setup(A); A.ext(stamp(0)); P1(A,True); A.ext(stamp(2)); P2(A,True); A.ext(stamp(3)); P4init(A); A.ext(stamp(4)); P4b(A,"sc1"); A.ext(stamp(5)); P3init(A); tasks(A)
def entry(A,name):
    A.ext(khdr(name))
    A(f"s_and_b32 s3, s2, 7\n s_cmp_eq_u32 s3, 0\n s_cbranch_scc1 {name}_x\n s_cmp_ge_u32 s2, 256\n s_cbranch_scc1 {name}_x")
    setup(A)
def hrg(A):
    A(f"s_mul_i32 {sH}, {sT}, 9363\n s_lshr_b32 {sH}, {sH}, 16\n s_mul_i32 {sA}, {sH}, 7\n s_sub_u32 {sRG}, {sT}, {sA}")
def k_gemm(name="k1_kernel"):
    A=Asm(); entry(A,name); P1(A,False); P2(A,False); A(f"{name}_x:\n s_endpgm"); return A.finish()+kdesc(name,512,256)
def k_attn(name="k3_kernel"):
    A=Asm(); entry(A,name); hrg(A); P3init(A)
    A(f"s_mov_b32 {sSEG}, {sRG}\n P3_top:")
    L,_=autowait(P3pre(sSEG)+P3post(sSEG,"")); A.ext(L)
    A(f"s_add_u32 {sSEG}, {sSEG}, 7\n s_cmp_lt_u32 {sSEG}, 64\n s_cbranch_scc1 P3_top\n {name}_x:\n s_endpgm"); return A.finish()+kdesc(name,512,256)
def k_out(name="k4_kernel"):
    A=Asm(); entry(A,name); P4init(A); P4b(A,"")
    A(f"s_mov_b32 {sSEG}, {sRG4}\n P4a_top:")
    L,_=autowait(P4a(sSEG,"")); A.ext(L)
    A(f"s_add_u32 {sSEG}, {sSEG}, 14\n s_cmp_lt_u32 {sSEG}, 64\n s_cbranch_scc1 P4a_top\n {name}_x:\n s_endpgm"); return A.finish()+kdesc(name,512,256)
HDR='.amdgcn_target "amdgcn-amd-amdhsa--gfx950"\n.text\n'
if __name__=="__main__":
    import sys
    for n,f in (("k1",k_gemm),("k3",k_attn),("k4",k_out)): open(f"../exp/{sys.argv[1]}_{n}.s","w").write(HDR+f())
```

```python
from asmlib import *
WS_KV   = 0
WS_KM   = 32 << 20
WS_MEM  = 48 << 20
WS_IN   = (48 << 20) + (1 << 19)
WS_DBG  = 50 << 20
vIDX=1; SEL0=2; SEL1=4; ONESM=6; RSEL=8; ONES=12; SENT=16
aX=20; aR=[21,22,23]; aW=24; aKV=25; aT=26; aP=27; aPUB=28; vTCH=29; vT0=30; vT1=31
X=32; KV=64; RING=80; P=104
vRES=144
def vr(b,n=1): return f"v{b}" if n==1 else f"v[{b}:{b+n-1}]"
SRD="s[8:11]"; sMC="s12"; sMN="s13"; sIC="s14"; sIO="s15"; sP0="s16"; sP1="s17"; sKV="s18"; sKN="s19"; sKM="s20"
sSTEP="s21"; sH="s22"; sW="s23"; sSPIN="s24"; sLO8="s[26:27]"; sLOH="s[28:29]"; sC="s30"
WSRD="s[32:35]"
from par import FL, FL_KV, FL_PR, stamp
sFO="s56"; sFN="s57"; sFE="s58"; sPR="s59"
OPT=set()
LDS_EX=8192; LDS_W=16384

def qkv_order():
    o=[]
    for m in "QK":
        for j in (0,1):
            for s in (0,1): o.append((m,j,s))
    for m in "QK":
        for j in range(2,8):
            for s in (0,1): o.append((m,j,s))
    for j in range(8):
        for s in (0,1): o.append(("V",j,s))
    return o
def wo_order():
    return [("O",u,jj,t) for u in (0,1) for jj in range(4) for t in (0,1)]
RINGPOS=[8,12,16,20,24,28,32,36,40,44,47]
WOLDS=[3,5,7,9,11,13,15]
def placement():
    loc={}; na=nv=nl=0
    q=qkv_order(); w=wo_order()
    for i,k in enumerate(q):
        if i in RINGPOS: loc[k]=("l",nl); nl+=1
    for i,k in enumerate(w):
        if i in WOLDS: loc[k]=("l",nl); nl+=1
    for k in q+w:
        if k in loc: continue
        if na<32: loc[k]=("a",8*na); na+=1
        else: loc[k]=("v",vRES+8*nv); nv+=1
    assert nl==18 and nv==14
    return loc
LOC=placement()

def prologue(A, bounded):
    A(f"""
    v_lshrrev_b32 v2, 6, v0
    v_and_b32 v0, 63, v0
    s_lshr_b32 {sH}, s2, 3
    v_readfirstlane_b32 {sW}, v2
    s_load_dwordx2 s[8:9], s[0:1], 112
    s_load_dwordx2 s[36:37], s[0:1], 104
    s_load_dwordx2 s[38:39], s[0:1], 8
    s_load_dwordx8 s[40:47], s[0:1], 16
    s_mov_b32 s10, 0x10000000
    s_mov_b32 s11, 0x20000
    s_mov_b32 s34, 0x400000
    s_mov_b32 s35, 0x20000
    v_and_b32 v2, 15, v0
    v_lshrrev_b32 v3, 4, v0
    """)
    A(f"""
    s_lshl_b32 s48, {sW}, 11
    v_lshlrev_b32 v4, 4, v0
    v_add_u32 v{aX}, s48, v4
    """)
    for k in range(3):
        A(f"""
        s_add_u32 s49, {sW}, {k+1}
        s_and_b32 s49, s49, 3
        s_lshl_b32 s49, s49, 11
        v_add_u32 v{aR[k]}, s49, v4""")
    A(f"""
    s_mul_i32 s49, {sW}, {18*2048}
    s_add_u32 s49, s49, {LDS_W}
    v_add_u32 v{aW}, s49, v4
    s_lshl_b32 s49, {sW}, 12
    v_add_u32 v{aKV}, s49, v4
    v_lshlrev_b32 v5, 6, v0
    v_add_u32 v{aT}, s49, v5
    """)
    A(f"""
    s_lshl_b32 s49, {sW}, 16
    v_lshlrev_b32 v5, 13, v3
    v_add_u32 v5, s49, v5
    v_lshrrev_b32 v6, 2, v2
    v_lshl_add_u32 v5, v6, 11, v5
    v_and_b32 v6, 3, v2
    v_lshl_add_u32 v{aP}, v6, 4, v5
    s_lshr_b32 s49, {sH}, 1
    s_lshl_b32 s49, s49, 6
    s_and_b32 s50, {sH}, 1
    s_lshl_b32 s51, s50, 15
    s_add_u32 {sP0}, s49, s51
    s_add_u32 {sP0}, {sP0}, {WS_IN}
    s_xor_b32 {sP1}, {sP0}, {32768+1024}
    s_lshl_b32 {sIC}, {sH}, 13
    s_add_u32 {sIC}, {sIC}, {WS_IN}
    s_xor_b32 {sIO}, {sIC}, {1<<18}
    s_mov_b32 {sMC}, {WS_MEM}
    s_mov_b32 {sMN}, {WS_MEM+8192}
    s_lshl_b32 {sKV}, {sH}, 14
    s_add_u32 {sKN}, {sKV}, {1<<19}
    s_lshl_b32 {sKM}, {sH}, 13
    s_add_u32 {sKM}, {sKM}, {WS_KM}
    s_mov_b32 {sSTEP}, 0
    s_mov_b32 s26, 0x00ff00ff
    s_mov_b32 s27, 0x00ff00ff
    s_mov_b32 s28, -1
    s_mov_b32 s29, 0
    s_mov_b32 {sC}, 0x3e0293ee
    """)
    A(f"""
    s_lshr_b32 s49, {sH}, 1
    s_lshl_b32 s49, s49, 2
    s_add_u32 s49, s49, {sW}
    s_lshl_b32 s49, s49, 7
    s_lshl_b32 s50, s50, 6
    s_add_u32 s49, s49, s50
    v_bfe_u32 v5, v0, 1, 2
    v_lshlrev_b32 v5, 4, v5
    v_and_b32 v6, 1, v3
    v_lshl_add_u32 v5, v6, 3, v5
    v_lshrrev_b32 v6, 1, v3
    v_lshl_add_u32 v5, v6, 2, v5
    v_add_u32 v{aPUB}, s49, v5
    """)
    for k in range(4): A(f"v_mov_b32 v{SENT+k}, -1")
    A("s_waitcnt lgkmcnt(0)")
    for so in (sIC, sIO):
        for o in (0,1024): A(f"buffer_store_dwordx4 {vr(SENT,4)}, v{aX}, {SRD}, {so} offen offset:{o} sc1")
    for so in (sMC, sMN): A(f"buffer_store_dword v{SENT}, v{aPUB}, {SRD}, {so} offen sc1")
    for k in range(4): A(f"v_mov_b32 v{X+k}, 0")
    A(f"""s_lshl_b32 s49, {sH}, 11
    s_and_b32 s50, {sW}, 1
    s_lshl_b32 s50, s50, 10
    s_add_u32 s49, s49, s50
    s_add_u32 s49, s49, {FL}
    buffer_store_dwordx4 {vr(X,4)}, v4, {SRD}, s49 offen sc1
    s_lshl_b32 {sPR}, {sH}, 7
    s_lshl_b32 {sFO}, {sW}, 5
    s_add_u32 {sFO}, {sFO}, {sPR}
    s_add_u32 {sFO}, {sFO}, {FL_KV}
    s_add_u32 {sFE}, {sFO}, 28
    s_add_u32 {sPR}, {sPR}, {FL_PR}
    s_mov_b32 {sFN}, 1""")
    A(f"""
    s_waitcnt vmcnt(0)
    s_barrier
    s_cmp_lg_u32 {sW}, 0
    s_cbranch_scc1 L_noarr
    s_getreg_b32 s49, hwreg(HW_REG_XCC_ID)
    s_and_b32 s49, s49, 7
    s_lshl_b32 s49, s49, 3
    s_lshl_b64 s[50:51], 1, s49
    v_mov_b32 v6, s50
    v_mov_b32 v7, s51
    v_mov_b32 v5, 0
    s_mov_b64 exec, 1
    global_atomic_add_x2 v5, v[6:7], s[36:37] offset:248 sc1
    s_mov_b64 exec, -1
    L_noarr:
    """)
    A(f"""
    v_lshrrev_b32 v5, 1, v3
    v_and_b32 v6, 1, v3
    v_lshlrev_b32 v7, 17, v5
    v_lshl_add_u32 v7, v6, 15, v7
    s_lshl_b32 s49, {sH}, 8
    s_lshl_b32 s50, {sW}, 6
    s_add_u32 s49, s49, s50
    v_add_u32 v7, s49, v7
    v_lshl_add_u32 v29, v2, 1, v7
    v_bfe_u32 v30, v2, 1, 1
    v_lshl_add_u32 v7, v30, 5, v7
    v_lshrrev_b32 v30, 2, v2
    v_lshl_add_u32 v7, v30, 3, v7
    v_and_b32 v30, 1, v2
    v_lshl_add_u32 v30, v30, 2, v7
    v_lshlrev_b32 v7, 12, v5
    v_lshl_add_u32 v7, v6, 11, v7
    v_lshl_add_u32 v7, v2, 2, v7
    s_lshl_b32 s49, {sH}, 17
    s_lshl_b32 s50, {sW}, 8
    s_add_u32 s49, s49, s50
    v_add_u32 v31, s49, v7
    s_mov_b32 s52, 0x05040100
    s_mov_b32 s53, 0x07060302
    s_and_b32 s54, {sH}, 1
    s_lshl_b32 s54, s54, 7
    """)
    batches=[(m,j) for m in "QK" for j in range(8)]+[("V",j,s_) for j in range(8) for s_ in (0,1)]+[("O",u,jj) for u in (0,1) for jj in range(4)]
    NB=3; ST=32; TMP=ST+16*NB+0
    def issue(bi):
        b=batches[bi]; st=ST+16*(bi%NB); L=[]
        mi="QKVO".index(b[0])
        if bi%8==0: L+= [f"s_mov_b32 s32, s{40+2*mi}", f"s_mov_b32 s33, s{41+2*mi}"]
        if b[0]!="O":
            L+=[f"s_lshl_b32 s49, {sW}, 1", f"s_add_u32 s49, s49, {b[1]}", "s_and_b32 s49, s49, 7", "s_lshl_b32 s49, s49, 19"]
            for D in range(8):
                for e in (0,1):
                    row=32*(D>>2)+8*(D&1)+2*((D>>1)&1)+e
                    if b[0]=="V":
                        L+=[f"s_add_u32 s50, s49, {row*8192}", f"buffer_load_ushort v{st+2*D+e}, v29, {WSRD}, s50 offen offset:{32*b[2]}"]
                    else:
                        L+=[f"s_add_u32 s50, s49, {row*8192}", f"buffer_load_dword v{st+2*D+e}, v30, {WSRD}, s50 offen"]
        else:
            L+=[f"s_add_u32 s49, {sW}, {b[2]}", "s_and_b32 s49, s49, 3", "s_lshl_b32 s49, s49, 15", f"s_xor_b32 s50, s54, {128*b[1]}", "s_add_u32 s49, s49, s50"]
            for D in range(8):
                for e in (0,1):
                    row=8*(D>>2)+((D>>1)&1)+16*e
                    L+=[f"s_add_u32 s50, s49, {row*1024+64*(D&1)}", f"buffer_load_dword v{st+2*D+e}, v31, {WSRD}, s50 offen"]
        return L
    def consume(bi):
        b=batches[bi]; st=ST+16*(bi%NB); L=[]
        for s in ((0,) if b[0]=="V" else (0,1)):
            kind,idx=LOC[b if b[0]=="V" else b+(s,)]
            dst = idx if kind=="v" else TMP+8*s
            for D in range(8): L.append(f"v_perm_b32 v{dst+D}, v{st+2*D+1}, v{st+2*D}, s{52+s}")
            if kind=="a":
                for D in range(8): L.append(f"v_accvgpr_write_b32 a{idx+D}, v{dst+D}")
            if kind=="l":
                L+=[f"ds_write_b128 v{aW}, {vr(dst,4)} offset:{idx*2048}", f"ds_write_b128 v{aW}, {vr(dst+4,4)} offset:{idx*2048+1024}"]
        return L
    L=[]
    for bi in range(NB): L+=issue(bi)
    for bi in range(len(batches)):
        L+=consume(bi)
        if bi+NB<len(batches): L+=issue(bi+NB)
    L,_=autowait(L); A.ext(L)
    A(f"""
    v_and_b32 v2, 15, v0
    v_lshrrev_b32 v3, 4, v0
    v_and_b32 v5, 7, v0
    v_mov_b32 v6, 0x4444
    v_mov_b32 v7, 0xeeee
    v_cndmask_b32 v{vIDX}, v7, v6, {sLO8}
    v_lshlrev_b32 v30, 2, v3
    v_sub_u32 v30, v5, v30
    v_mov_b32 v31, v5
    v_mov_b32 v29, 0x3f80
    v_mov_b32 v96, 0x3f800000
    """)
    def selgen(dst, src, add, n):
        for k in range(n):
            A(f"""v_cmp_eq_u32 vcc, {2*k-add}, v{src}
            v_cndmask_b32 v97, 0, v29, vcc
            v_cmp_eq_u32 vcc, {2*k+1-add}, v{src}
            v_cndmask_b32 v{dst+k}, v97, v96, vcc""")
    selgen(SEL0,30,0,2); selgen(SEL1,30,8,2); selgen(RSEL,31,0,4)
    for k in range(4): A(f"v_mov_b32 v{ONES+k}, 0x3f803f80")
    for k in range(2): A(f"v_cndmask_b32 v{ONESM+k}, 0, v{ONES}, {sLOH}")
    A(f"""
    v_lshlrev_b32 v30, 10, v31
    v_lshrrev_b32 v31, 3, v0
    v_lshl_add_u32 v30, v31, 4, v30
    s_lshl_b32 s49, {sW}, 8
    v_add_u32 v30, s49, v30
    global_load_dwordx4 {vr(X,4)}, v30, s[38:39]
    global_load_dwordx4 {vr(X+4,4)}, v30, s[38:39] offset:128
    s_waitcnt lgkmcnt(0)
    """)
    A.ext(ringload(0,0)+ringload(1,1)+ringload(2,2)+zero(P,24))
    A(f"""
    v_mov_b32 v30, 0
    s_mov_b32 {sSPIN}, 0
    L_hs:
    global_load_dwordx2 v[64:65], v30, s[36:37] offset:248 sc1
    s_waitcnt vmcnt(0)
    v_readfirstlane_b32 s50, v64
    v_readfirstlane_b32 s51, v65
    """)
    if bounded: A(f"s_add_u32 {sSPIN}, {sSPIN}, 1\n s_cmp_gt_u32 {sSPIN}, 0x80000\n s_cbranch_scc1 L_end")
    A(f"""
    s_add_u32 s49, s50, s51
    s_mul_i32 s49, s49, 0x01010101
    s_lshr_b32 s49, s49, 24
    s_cmp_lt_u32 s49, 32
    s_cbranch_scc1 L_hs
    s_or_b32 s49, s50, s51
    s_and_b32 s49, s49, 0x20202020
    s_waitcnt lgkmcnt(0)
    """)
    A.ext(stamp(1,sW,64))
    A("L_kv0:")
    A(f"s_add_u32 {sSPIN}, {sSPIN}, 1\n s_cmp_gt_u32 {sSPIN}, 0x80000\n s_cbranch_scc1 L_end")
    A(f"""buffer_load_dwordx2 v[64:65], off, {SRD}, {sFO} sc1
    s_waitcnt vmcnt(0)
    v_min_u32 v64, v64, v65
    v_cmp_gt_u32 vcc, 1, v64
    s_cbranch_vccnz L_kv0
    s_add_u32 {sFO}, {sFO}, 8""")

def ringload(slot, ldsidx, base=None):
    b = RING+8*slot if base is None else base
    return [f"ds_read_b128 {vr(b,4)}, v{aW} offset:{ldsidx*2048}", f"ds_read_b128 {vr(b+4,4)}, v{aW} offset:{ldsidx*2048+1024}"]
def zero(b,n): return [f"v_mov_b64 {vr(b+k,2)}, 0" for k in range(0,n,2)]
def smf(acc,a,breg): return f"v_smfmac_f32_16x16x64_bf16 {vr(acc,4)}, {vr(a,4)}, {breg}, v{vIDX}"
def m32(d,a,b,c="0"): return f"v_mfma_f32_16x16x32_bf16 {vr(d,4)}, {vr(a,4)}, {vr(b,4)}, {c}"
def m16(d,a,b,c="0"): return f"v_mfma_f32_16x16x16_bf16 {vr(d,4)}, {vr(a,2)}, {vr(b,2)}, {c}"
def pk(d,a,b): return f"v_cvt_pk_bf16_f32 v{d}, v{a}, v{b}"
def fold(acc):
    return [f"v_permlane32_swap_b32 v{acc+r}, v{acc+4+r}" for r in range(4)] + [f"v_add_f32 v{acc+r}, v{acc+r}, v{acc+4+r}" for r in range(4)] + [pk(acc+4,acc,acc+1), pk(acc+5,acc+2,acc+3)]
def check8(b, t):
    return [f"v_max3_u32 v{t}, v{b}, v{b+1}, v{b+2}", f"v_max3_u32 v{t+1}, v{b+3}, v{b+4}, v{b+5}", f"v_max3_u32 v{t}, v{t}, v{b+6}, v{b+7}",
            f"v_max_u32 v{t}, v{t}, v{t+1}", f"v_cmp_eq_u32 vcc, -1, v{t}"]

def loop(A, tag, sc, bounded, dbg=False, prof=False):
    aQ,aK,aV,aO,qT=P,P+8,P+16,P+24,P+36
    ACC={"Q":aQ,"K":aK,"V":aV}
    spin = (lambda: [f"s_add_u32 {sSPIN}, {sSPIN}, 1", f"s_cmp_gt_u32 {sSPIN}, 0x80000", "s_cbranch_scc1 L_end"]) if bounded else (lambda: [])
    q=qkv_order()
    ringuse={p:i for i,p in enumerate(RINGPOS)}
    def qs(i):
        m,j,s=q[i]; kind,idx=LOC[q[i]]
        if kind=="l": b=vr(RING+8*(ringuse[i]%3),8)
        else: b=f"{kind}[{idx}:{idx+7}]"
        L=[smf(ACC[m]+4*s, X+4*j, b)]
        if kind=="l" and ringuse[i]+3<len(RINGPOS): L+=ringload(ringuse[i]%3, ringuse[i]+3)
        return L
    w=wo_order()
    wdst={}
    for n,p in enumerate(WOLDS): wdst[p] = X+8*n if n<4 else RING+8*(n-4)
    nd=[0]
    def dump(b,n):
        if not dbg: return []
        o=["s_nop 7","s_nop 7","s_waitcnt lgkmcnt(0)", f"v_lshlrev_b32 v{vTCH}, 2, v0", f"s_lshl_b32 s70, {sH}, 10", f"s_lshl_b32 s71, {sW}, 8", "s_add_u32 s70, s70, s71"]
        for k in range(n):
            o+=[f"s_add_u32 s71, s70, {WS_DBG+65536+nd[0]*32768}", f"buffer_store_dword v{b+k}, v{vTCH}, {SRD}, s71 offen"]; nd[0]+=1
        return ["s_waitcnt vmcnt(0)"]+o+["s_waitcnt vmcnt(0)"]
    def T(k): return [f"s_memtime s[{66+2*k}:{67+2*k}]"] if prof else []
    L=[f"{tag}_top:"]+T(0)
    L+=[f"{tag}_poll:"]+spin()
    L+=[f"buffer_load_dwordx4 {vr(X,4)}, v{aX}, {SRD}, {sMC} offen sc1", f"buffer_load_dwordx4 {vr(X+4,4)}, v{aX}, {SRD}, {sMC} offen offset:1024 sc1", "s_waitcnt vmcnt(0)"]
    L+=check8(X,vT0)+[f"s_cbranch_vccnz {tag}_poll"]
    L+=[f"{tag}_go:", "s_waitcnt vmcnt(0)"]+T(1)
    L+=[f"ds_write_b128 v{aX}, {vr(X,4)}", f"ds_write_b128 v{aX}, {vr(X+4,4)} offset:1024"]
    L+=qs(0)+qs(1)+["s_waitcnt lgkmcnt(0)","s_barrier"]+T(2)
    xr=[f"ds_read_b128 {vr(X+4*j,4)}, v{aR[j//2-1]} offset:{1024*(j&1)}" for j in range(2,8)]
    kv=[f"buffer_load_dwordx4 {vr(KV+4*k,4)}, v{aKV}, {SRD}, {sKV} offen offset:{1024*k} sc1" for k in range(4)]
    bg=[f"buffer_load_dword v{vTCH}, v{aT}, {SRD}, {sKN} offen sc1",
        f"buffer_load_dword v0, off, {SRD}, {sFO} sc1",
        f"buffer_store_dwordx4 {vr(SENT,4)}, v{aX}, {SRD}, {sIO} offen {sc}", f"buffer_store_dwordx4 {vr(SENT,4)}, v{aX}, {SRD}, {sIO} offen offset:1024 {sc}",
        f"buffer_store_dword v{SENT}, v{aPUB}, {SRD}, {sMN} offen {sc}"]
    L+=xr[:2]
    def seq(lo,hi,fill,per=2,lead=0):
        out=[]; f=list(fill)
        for n,i in enumerate(range(lo,hi)):
            g=qs(i); out+=g; k=per-(len(g)-1)
            if n>=lead:
                for _ in range(max(k,0)):
                    if f: out.append(f.pop(0))
        return out+f
    L+=seq(2,8,xr[2:]+kv+bg)
    L+=seq(8,20,[])
    qpost=fold(aQ)+[m16(aO,aQ+4,SEL0), m16(aO+4,aQ+4,SEL1)]
    L+=seq(20,28,qpost,lead=2)
    qpost2=[pk(qT+r,aO+r,aO+4+r) for r in range(4)]+[m32(aQ,KV,qT), m32(aQ+4,KV+4,qT)]
    L+=seq(28,32,qpost2,lead=1)
    sx=[f"v_cndmask_b32 v{aQ+r}, v{aQ+4+r}, v{aQ+r}, {sLO8}" for r in range(4)]+[f"ds_write_b128 v{aX}, {vr(aQ,4)} offset:{LDS_EX}"]
    kpost=fold(aK)+[m16(aO,aK+4,SEL0), m16(aO+4,aK+4,SEL1)]
    L+=seq(32,36,kpost,per=3,lead=1)
    L+=seq(36,38,sx,per=3)
    kT=aK+4
    L+=[pk(kT+r,aO+r,aO+4+r) for r in range(4)]+[m32(aK,kT,qT)]
    L+=seq(38,40,[f"buffer_store_dwordx4 {vr(kT,4)}, v{aX}, {SRD}, {sKM} offen {'' if 'kmplain' in OPT else 'sc1'}"])
    L+=[f"v_cndmask_b32 v{aK+r}, v{aK+2+r}, v{aK+r}, {sLO8}" for r in range(2)]+[f"ds_write_b64 v{aX}, {vr(aK,2)} offset:{LDS_EX+1024}"]
    L+=T(3)+seq(40,42,[])+["s_waitcnt lgkmcnt(0)","s_barrier"]+T(4)
    sr=[]
    for k in range(3): sr+=[f"ds_read_b128 {vr(aO+4*k,4)}, v{aR[k]} offset:{LDS_EX}", f"ds_read_b64 {vr(aQ+4+2*k if k<2 else aK+2,2)}, v{aR[k]} offset:{LDS_EX+1024}"]
    L+=sr[:2]+seq(42,48,sr[2:])
    wl=[]
    for p in WOLDS: wl+=ringload(0,LOC[w[p]][1],base=wdst[p])
    S=[aQ,aQ+1,aQ+2,aQ+3,aK,aK+1]
    for r in range(4): L+=[f"v_add_f32 v{aQ+r}, v{aQ+r}, v{aO+r}"]
    for r in range(2): L+=[f"v_add_f32 v{aK+r}, v{aK+r}, v{aQ+4+r}"]
    for r in range(4): L+=[f"v_add_f32 v{aO+4+r}, v{aO+4+r}, v{aO+8+r}"]
    for r in range(2): L+=[f"v_add_f32 v{aQ+6+r}, v{aQ+6+r}, v{aK+2+r}"]
    for r in range(4): L+=[f"v_add_f32 v{aQ+r}, v{aQ+r}, v{aO+4+r}"]
    for r in range(2): L+=[f"v_add_f32 v{aK+r}, v{aK+r}, v{aQ+6+r}"]
    m,t=vT0,vT1
    L+=dump(qT,4)+dump(aQ,4)+dump(aK,2)
    vf=fold(aV)
    vm=[f"v_cndmask_b32 v{aV+r}, 0, v{aV+4+r}, {sLOH}" for r in range(2)]+[f"v_cndmask_b32 v{aV+2+r}, v{aV+4+r}, 0, {sLOH}" for r in range(2)]+\
       [f"buffer_store_dwordx4 {vr(aV,4)}, v{aX}, {SRD}, {sKM} offen offset:1024 {'' if 'kmplain' in OPT else 'sc1'}"]
    fill=vf+vm+wl+zero(aO,16)
    def F(n):
        o=[]
        for _ in range(n):
            if fill: o.append(fill.pop(0))
        return o
    L+=[f"v_max3_f32 v{m}, v{S[0]}, v{S[1]}, v{S[2]}", f"v_max3_f32 v{m}, v{m}, v{S[3]}, v{S[4]}", f"v_max_f32 v{m}, v{m}, v{S[5]}"]+F(2)
    L+=[f"v_max_f32_dpp v{m}, v{m}, v{m} row_ror:8 row_mask:0xf bank_mask:0xf", f"v_mov_b32 v{t}, v{m}"]+F(2)
    L+=[f"v_permlane32_swap_b32 v{m}, v{t}"]+F(1)+[f"v_max_f32 v{m}, v{m}, v{t}", f"v_mov_b32 v{t}, v{m}"]+F(2)
    L+=[f"v_permlane16_swap_b32 v{m}, v{t}"]+F(1)+[f"v_max_f32 v{m}, v{m}, v{t}", f"v_mul_f32 v{m}, {sC}, v{m}"]
    for r in S: L+=[f"v_fma_f32 v{r}, v{r}, {sC}, -v{m}"]
    for r in S: L+=[f"v_exp_f32 v{r}, v{r}"]
    L+=F(7)
    Px=aQ+4; Pm=aK+2
    L+=[pk(Px,S[0],S[1]),pk(Px+1,S[2],S[3]),pk(Px+2,S[0],S[1]),pk(Px+3,S[2],S[3]),pk(Pm,S[4],S[5]),pk(Pm+1,S[4],S[5])]
    for r,bm in ((Px,"0xc"),(Px+1,"0xc"),(Px+2,"0x3"),(Px+3,"0x3"),(Pm,"0xc"),(Pm+1,"0x3")):
        L+=[f"v_mov_b32_dpp v{r}, v{r} row_ror:8 row_mask:0xf bank_mask:{bm}"]
    L+=dump(Px,4)+dump(Pm,2)
    L+=[f"s_cmp_eq_u32 {sSTEP}, 63", f"s_cbranch_scc1 L_fin"]
    Ls,O0,O1=aQ,aK+4,aV+4
    L+=[m32(Ls,ONES,Px)]+F(2)+[m32(O0,KV+8,Px)]+F(2)+[m32(O1,KV+12,Px)]+F(2)+[m16(Ls,ONESM,Pm,vr(Ls,4))]+F(2)
    L+=[m16(O0,aV,Pm,vr(O0,4))]+F(2)+[m16(O1,aV+2,Pm,vr(O1,4))]+F(2)+[f"v_rcp_f32 v{m}, v{Ls}"]+F(99)
    for r in range(4): L+=[f"v_mul_f32 v{O0+r}, v{O0+r}, v{m}"]
    for r in range(4): L+=[f"v_mul_f32 v{O1+r}, v{O1+r}, v{m}"]
    oA=[KV,KV+4,KV+8,KV+12]
    L+=[pk(oA[0]+r,O0+r,O1+r) for r in range(4)]
    L+=dump(oA[0],4)+dump(m,1)
    L+=[f"ds_write_b128 v{aX}, {vr(oA[0],4)}"]
    def ws_(i):
        _,u,jj,t_=w[i]; kind,idx=LOC[w[i]]
        b = vr(wdst[i],8) if kind=="l" else f"{kind}[{idx}:{idx+7}]"
        return smf(aO+8*u+4*t_, oA[jj], b)
    L+=T(5)+[ws_(0),ws_(1),"s_waitcnt vmcnt(0) lgkmcnt(0)","s_barrier"]+T(6)
    L+=[f"ds_read_b128 {vr(oA[k+1],4)}, v{aR[k]}" for k in range(3)]
    L+=[ws_(8), f"v_mov_b32 v{vTCH}, {sSTEP}", ws_(9), f"v_add_u32 v{vTCH}, 1, v{vTCH}", ws_(2), "s_mov_b64 exec, 1", f"buffer_store_dword v{vTCH}, off, {SRD}, {sPR} sc1", "s_mov_b64 exec, -1"]+[ws_(i) for i in range(3,8)]
    def part(u,dst,so):
        return [pk(dst+r,aO+8*u+r,aO+8*u+4+r) for r in range(4)]+[f"v_min_u32 v{dst+r}, -2, v{dst+r}" for r in range(4)]+\
               [f"buffer_store_dwordx4 {vr(dst,4)}, v{aP}, {SRD}, {so} offen {sc}"]
    L+=weave([ws_(i) for i in range(10,16)], part(0,aQ,sP0), per=3, lead=2)
    L+=part(1,aQ+4,sP1)
    L+=dump(aQ,8)+T(7)
    upd=[f"s_xor_b32 {sP0}, {sP0}, {1<<18}", f"s_xor_b32 {sP1}, {sP1}, {1<<18}", f"s_add_u32 {sKV}, {sKV}, {0 if 'kvfix' in OPT else 1<<19}", f"s_add_u32 {sKN}, {sKN}, {0 if 'kvfix' in OPT else 1<<19}",
         f"s_add_u32 {sKM}, {sKM}, {1<<18}", f"s_add_u32 {sSTEP}, {sSTEP}, 1"]
    L+=ringload(0,0)+ringload(1,1)+ringload(2,2)+upd+zero(aK,16)
    L+=[f"s_cmp_gt_u32 {sSTEP}, 62", f"s_cbranch_scc1 {tag}_kvok", f"{tag}_kvchk:", f"v_cmp_le_u32 vcc, {sFN}, v0", f"s_cbranch_vccnz {tag}_kvok"]+spin()+\
       [f"buffer_load_dword v0, off, {SRD}, {sFO} sc1", "s_waitcnt vmcnt(0)", f"s_branch {tag}_kvchk", f"{tag}_kvok:",
        f"s_add_u32 {sFO}, {sFO}, 4", f"s_cmp_eq_u32 {sFO}, {sFE}", f"s_addc_u32 {sFN}, {sFN}, 0", f"s_cmp_eq_u32 {sFO}, {sFE}", f"s_cselect_b32 s60, 28, 0", f"s_sub_u32 {sFO}, {sFO}, s60"]
    if stamp(0):
        L+=[f"s_and_b32 s60, {sSTEP}, 7", f"s_cbranch_scc1 {tag}_nost"]+stamp(4,sW,vTCH)[:5]+[f"s_lshr_b32 s60, {sSTEP}, 1", "s_add_u32 s86, s86, s60"]+stamp(4,sW,vTCH)[5:]+[f"{tag}_nost:"]
    G=KV; R=aO
    L+=[f"{tag}_in:"]+spin()
    L+=[f"buffer_load_dwordx4 {vr(G,4)}, v{aX}, {SRD}, {sIC} offen sc1", f"buffer_load_dwordx4 {vr(G+4,4)}, v{aX}, {SRD}, {sIC} offen offset:1024 sc1", "s_waitcnt vmcnt(0)"]
    L+=[m32(R,G,RSEL), m32(R,G+4,RSEL,vr(R,4))]+check8(G,vT0)+[f"s_cbranch_vccnz {tag}_in"]+T(8)
    L+=[f"v_permlane32_swap_b32 v{R}, v{R+1}", f"v_permlane32_swap_b32 v{R+2}, v{R+3}", f"v_add_f32 v{R}, v{R}, v{R+1}", f"v_add_f32 v{R+2}, v{R+2}, v{R+3}",
        f"v_permlane16_swap_b32 v{R}, v{R+2}", f"v_add_f32 v{R}, v{R}, v{R+2}",
        f"v_mov_b32_dpp v{R+1}, v{R} quad_perm:[0,0,2,2] row_mask:0xf bank_mask:0xf", f"v_mov_b32_dpp v{R+2}, v{R} quad_perm:[1,1,3,3] row_mask:0xf bank_mask:0xf",
        pk(R,R+1,R+2), f"v_min_u32 v{R}, -2, v{R}", f"buffer_store_dword v{R}, v{aPUB}, {SRD}, {sMN} offen {sc}"]
    L+=dump(R,1)
    if dbg: L+=[f"s_cmp_eq_u32 {sSTEP}, {dbg}", "s_cbranch_scc1 L_end"]
    L+=[f"s_xor_b32 {sMC}, {sMC}, 8192", f"s_xor_b32 {sMN}, {sMN}, 8192", f"s_xor_b32 {sIC}, {sIC}, {1<<18}", f"s_xor_b32 {sIO}, {sIO}, {1<<18}"]+zero(aQ,8)
    L+=T(9)+["s_waitcnt lgkmcnt(0)"]
    if prof:
        L+=[f"s_cmp_lt_u32 {sSTEP}, 3", f"s_cbranch_scc1 {tag}_top"]
        for k in range(9): L+=[f"s_sub_u32 s{67+2*k}, s{68+2*k}, s{66+2*k}", f"s_add_u32 s{88+k}, s{88+k}, s{67+2*k}"]
    L+=[f"s_branch {tag}_top"]
    L,_=autowait(L); A.ext(L)

def body(A, bounded=True):
    prologue(A,bounded)
    A.ext(stamp(2,sW,64))
    A("s_cmp_eq_u32 s49, 0\n s_cbranch_scc1 S_go\n s_branch F_go")
    loop(A,"F","",bounded); loop(A,"S","sc1",bounded)
    A(f"""L_fin:
    s_waitcnt vmcnt(0)
    s_barrier
    v_mov_b32 v0, 64
    s_mov_b64 exec, 1
    buffer_store_dword v0, off, {SRD}, {sPR} sc1
    """)
    A.ext(stamp(3,sW,64))
    A("L_end:\n s_endpgm")
```
